```python
import torch

def _softmax(x, axis=-1):
    return torch.softmax(x, dim=axis)

def _gelu(x):
    return torch.nn.functional.gelu(x, approximate='tanh')

def _silu(x):
    return torch.nn.functional.silu(x)

def _sigmoid(x):
    return torch.sigmoid(x)

def _layernorm(x, axis=-1, eps=1e-05):
    m = x.mean(dim=axis, keepdim=True)
    v = x.var(dim=axis, keepdim=True, unbiased=False)
    return (x - m) / torch.sqrt(v + eps)

def _scatter_add(tgt, idx, src, axis=0):
    return tgt.clone().index_add_(axis, idx, src)

def _segment_sum(src, seg, n):
    out = torch.zeros((n,) + src.shape[1:], dtype=src.dtype)
    return out.index_add_(0, seg, src)

def _pad(x, pw):
    flat = tuple((v for pair in reversed(pw) for v in pair))
    return torch.nn.functional.pad(x, flat)
kernel_name = 'adaLN_cond__sliding_block__glu_gated_bilinear__prompt'

def setup_inputs():

    _w = lambda a: (lambda t: t.to(torch.bfloat16) if t.is_floating_point() else t)(torch.as_tensor(a))

    def _A_setup():
        B, S, D = (1, 2048, 640)
        return {'x': _w((lambda *s: torch.randn(*s, dtype=torch.bfloat16) * 0.05)(B, S, D)), 'wqkv': _w((lambda *s: torch.randn(*s, dtype=torch.bfloat16) * 0.05)(D, 3 * D)), 'wo': _w((lambda *s: torch.randn(*s, dtype=torch.bfloat16) * 0.05)(D, D))}
    _A_in = _A_setup()

    def _B_setup():
        B, S, D, F = (1, 2048, 640, 1536)
        return {'x': _w((lambda *s: torch.randn(*s, dtype=torch.bfloat16) * 0.05)(B, S, D)), 'w_gate': _w((lambda *s: torch.randn(*s, dtype=torch.bfloat16) * 0.8)(D, F) * D ** (-0.5)), 'w_up': _w((lambda *s: torch.randn(*s, dtype=torch.bfloat16) * 0.8)(D, F) * D ** (-0.5)), 'w_down': _w((lambda *s: torch.randn(*s, dtype=torch.bfloat16) * 0.8)(F, D) * F ** (-0.5))}
    _B_in = _B_setup()
    return {'A_x': _A_in['x'], 'A_wqkv': _A_in['wqkv'], 'A_wo': _A_in['wo'], 'B_x': _B_in['x'], 'B_w_gate': _B_in['w_gate'], 'B_w_up': _B_in['w_up'], 'B_w_down': _B_in['w_down'], 'c': _w((lambda *s: torch.randn(*s, dtype=torch.bfloat16) * 0.1)(1, 640) * 8.0), 'w_mod': _w((lambda *s: torch.randn(*s, dtype=torch.bfloat16) * 0.1)(640, 6 * 640) * 640 ** (-0.5) * 8.0)}

def reference(A_x, A_wqkv, A_wo, B_x, B_w_gate, B_w_up, B_w_down, c, w_mod):

    def _A_ref(x, wqkv, wo):
        B, S, D = x.shape
        H = 32
        Dh = D // H
        W = 256
        qkv = (lambda x, *d: x.permute(*d))((x @ wqkv).reshape(B, S, 3, H, Dh), 2, 0, 3, 1, 4)
        q, k, v = (qkv[0], qkv[1], qkv[2])
        scores = torch.einsum('bhqd,bhkd->bhqk', q, k) * Dh ** (-0.5)
        idx = torch.arange(S)
        mask = (idx[:, None] - idx[None, :] >= 0) & (idx[:, None] - idx[None, :] < W)
        scores = torch.where(mask[None, None], scores, -1000000000.0)
        p = _softmax(scores, axis=-1)
        o = torch.einsum('bhqk,bhkd->bhqd', p, v)
        return (lambda x, *d: x.permute(*d))(o, 0, 2, 1, 3).reshape(B, S, D) @ wo

    def _B_ref(x, w_gate, w_up, w_down):
        g = torch.einsum('bsd,df->bsf', x, w_gate)
        u = torch.einsum('bsd,df->bsf', x, w_up)
        h = g * u
        return torch.einsum('bsf,fd->bsd', h, w_down)
    x = A_x
    mod = (_silu(c) @ w_mod).reshape(c.shape[0], 6, 1, -1)
    sa, ca, ga, sb, cb, gb = (mod[:, 0].clone(), mod[:, 1].clone(), mod[:, 2].clone(), mod[:, 3].clone(), mod[:, 4].clone(), mod[:, 5].clone())
    h = _layernorm(x, axis=-1) * (1 + ca) + sa
    x = x + ga * _A_ref(h, A_wqkv, A_wo)
    h = _layernorm(x, axis=-1) * (1 + cb) + sb
    x = x + gb * _B_ref(h, B_w_gate, B_w_up, B_w_down)
    return x
```

```python
import sys

NAME = "adaLN_cond__sliding_block__glu_gated_bilinear__prompt"

KA = dict(x=0, wqkv=8, wo=16, bx=24, wg=32, wu=40, wd=48, c=56, wmod=64, out=72, dbg=80, ws=88)
WS = {}
_off = 0
def _ws(name, size):
    global _off
    _off = (_off + 4095) // 4096 * 4096
    WS[name] = (_off, size)
    _off += size
_ws("MOD", 3840*4)
_ws("H1", 64*40*1024)
_ws("W1", 16*40*4*1024)
_ws("W2", 16*40*6*1024)
_ws("CB2", 16*2048)
_ws("WO", 8*20*5*1024)
_ws("WD", 8*48*5*1024)
_ws("QF1", 32*64*1024)
_ws("QF2", 32*64*512)
_ws("KF1", 32*64*1024)
_ws("KF2", 32*64*512)
_ws("VR", 32*2048*64)
_ws("O", 128*20*1024)
_ws("X1", 64*40*1024)
_ws("STAT", 2048*8*8)
_ws("HH", 128*48*1024)

class K:
    def __init__(self, name):
        self.name = name
        self.lines = []
        self.nlab = 0
    def __call__(self, s=""):
        for l in s.split("\n"):
            l = l.strip()
            if l:
                self.lines.append(("" if l.endswith(":") else "  ") + l)
    def lab(self, base):
        self.nlab += 1
        return f"L_{self.name}_{base}_{self.nlab}"
    def text(self):
        return "\n".join(self.lines) + "\n"
    def kptr(self, sreg, key):
        self(f"s_load_dwordx2 s[{sreg}:{sreg+1}], s[0:1], {KA[key]}")
    def srd(self, d, base, size, add=0):
        if add:
            self(f"s_add_u32 s{d}, s{base}, {add:#x}")
            self(f"s_addc_u32 s{d+1}, s{base+1}, 0")
        else:
            self(f"s_mov_b32 s{d}, s{base}")
            self(f"s_mov_b32 s{d+1}, s{base+1}")
        self(f"s_and_b32 s{d+1}, s{d+1}, 0xffff")
        self(f"s_mov_b32 s{d+2}, {size:#x}")
        self(f"s_mov_b32 s{d+3}, 0x20000")
    def wsrd(self, d, wsbase, key):
        o, sz = WS[key]
        self.srd(d, wsbase, sz, o)

def header(launches):
    s = "; adaLN + sliding-window attention + GLU block for MI355X (gfx950), generated from a Python script\n"
    for k, g, b, lds in launches:
        s += f"; @launch kernel={k} grid=({g},1,1) block=({b},1,1) lds={lds}\n"
    s += '.amdgcn_target "amdgcn-amd-amdhsa--gfx950"\n.text\n'
    return s

def kern_begin(name):
    return f".globl {name}\n.p2align 8\n.type {name},@function\n{name}:\n"

def kern_desc(name, nvgpr, accoff, nsgpr=102):
    return f""".p2align 6
.amdhsa_kernel {name}
  .amdhsa_next_free_vgpr {nvgpr}
  .amdhsa_next_free_sgpr {nsgpr}
  .amdhsa_accum_offset {accoff}
  .amdhsa_group_segment_fixed_size 0
  .amdhsa_kernarg_size 96
  .amdhsa_user_sgpr_count 2
  .amdhsa_user_sgpr_kernarg_segment_ptr 1
  .amdhsa_system_sgpr_workgroup_id_x 1
  .amdhsa_float_denorm_mode_32 3
.end_amdhsa_kernel
"""

LOG2E = 1.4426950408889634
import struct
def f2u(x): return struct.unpack("<I", struct.pack("<f", x))[0]
def fhex(x): return f"{f2u(x):#010x}"

def k_mod():
    k = K("mod")
    NWG = 120
    k(f"""
    s_cmp_ge_u32 s2, {NWG}
    s_cbranch_scc1 L_mod_end
    """)
    k.kptr(4, "c"); k.kptr(6, "wmod"); k.kptr(8, "ws")
    k("""
    v_and_b32 v1, 3, v0            ; cc
    v_lshrrev_b32 v2, 2, v0        ; rg 0..63
    s_waitcnt lgkmcnt(0)
    """)
    k.srd(12, 4, 1280)
    k.srd(16, 6, 640*7680)
    k.wsrd(20, 8, "MOD")
    k("""
    v_lshlrev_b32 v3, 1, v2
    s_mov_b32 s24, 7680
    v_mul_lo_u32 v4, v2, s24       ; row*7680
    v_lshlrev_b32 v5, 4, v1        ; cc*16
    v_add_u32 v4, v4, v5
    s_lshl_b32 s25, s2, 6
    v_add_u32 v4, s25, v4
    """)
    for it in range(10):
        k(f"buffer_load_ushort v{10+it}, v3, s[12:15], 0 offen offset:{it*128}")
    for it in range(10):
        k(f"s_mov_b32 s26, {it*64*7680}")
        k(f"buffer_load_dwordx4 v[{20+4*it}:{23+4*it}], v4, s[16:19], s26 offen")
    k("s_waitcnt vmcnt(10)")
    k(f"s_mov_b32 s27, {fhex(-LOG2E)}")
    for it in range(10):
        k(f"v_lshlrev_b32 v{10+it}, 16, v{10+it}")
    for it in range(10):
        k(f"v_mul_f32 v{60+it}, s27, v{10+it}")
    for it in range(10):
        k(f"v_exp_f32 v{60+it}, v{60+it}")
    k("s_nop 0")
    for it in range(10):
        k(f"v_add_f32 v{60+it}, 1.0, v{60+it}")
    for it in range(10):
        k(f"v_rcp_f32 v{60+it}, v{60+it}")
    k("s_nop 0")
    for it in range(10):
        k(f"v_mul_f32 v{10+it}, v{10+it}, v{60+it}")
    for it in range(10):
        k(f"v_cvt_pk_bf16_f32 v{10+it}, v{10+it}, v{10+it}")
    for it in range(10):
        k(f"v_lshlrev_b32 v{10+it}, 16, v{10+it}")
    for j in range(8):
        k(f"v_mov_b32 v{70+j}, 0")
    for it in range(10):
        k(f"s_waitcnt vmcnt({9-it})")
        for r in range(4):
            w = 20+4*it+r
            k(f"v_lshlrev_b32 v80, 16, v{w}")
            k(f"v_and_b32 v81, 0xffff0000, v{w}")
            k(f"v_fmac_f32 v{70+2*r}, v{10+it}, v80")
            k(f"v_fmac_f32 v{71+2*r}, v{10+it}, v81")
    k("s_nop 1")
    for sh in (4, 8):
        for j in range(8):
            k(f"v_add_f32_dpp v{82+j}, v{70+j}, v{70+j} row_ror:{sh} row_mask:0xf bank_mask:0xf")
        k("s_nop 1")
        for j in range(8):
            k(f"v_mov_b32 v{70+j}, v{82+j}")
        k("s_nop 1")
    k("""
    v_lshrrev_b32 v5, 4, v0
    v_lshlrev_b32 v5, 7, v5        ; *128 bytes
    v_lshlrev_b32 v6, 5, v1        ; cc*32
    v_add_u32 v5, v5, v6
    v_and_b32 v6, 12, v0
    v_cmp_eq_u32 vcc, 0, v6
    s_and_saveexec_b64 s[28:29], vcc
    ds_write_b128 v5, v[70:73]
    ds_write_b128 v5, v[74:77] offset:16
    s_mov_b64 exec, s[28:29]
    s_waitcnt lgkmcnt(0)
    s_barrier
    v_cmp_gt_u32 vcc, 32, v0
    s_and_saveexec_b64 s[28:29], vcc
    s_cbranch_execz L_mod_end
    v_lshlrev_b32 v5, 2, v0
    """)
    for p in range(16):
        k(f"ds_read_b32 v{20+p}, v5 offset:{p*128}")
    k("s_waitcnt lgkmcnt(0)")
    for p in range(1, 16):
        k(f"v_add_f32 v20, v20, v{20+p}")
    k("""
    v_cvt_pk_bf16_f32 v20, v20, v20
    v_lshlrev_b32 v20, 16, v20
    s_cmp_ge_u32 s2, 20
    s_cselect_b32 s26, 1, 0
    s_cmp_lt_u32 s2, 40
    s_cselect_b32 s27, s26, 0
    s_cmp_ge_u32 s2, 80
    s_cselect_b32 s26, 1, 0
    s_cmp_lt_u32 s2, 100
    s_cselect_b32 s26, s26, 0
    s_or_b32 s26, s26, s27
    s_cmp_eq_u32 s26, 0
    s_cbranch_scc1 L_mod_store
    v_add_f32 v20, 1.0, v20
    v_cvt_pk_bf16_f32 v20, v20, v20
    v_lshlrev_b32 v20, 16, v20
    L_mod_store:
    s_lshl_b32 s25, s2, 7
    v_add_u32 v5, s25, v5
    buffer_store_dword v20, v5, s[20:23], 0 offen
    L_mod_end:
    s_endpgm
    """)
    return k.text(), NWG, 256, 4096, 96, 96


def k_prep():
    k = K("prep")
    NWG = 304
    k(f"""
    s_cmp_ge_u32 s2, {NWG}
    s_cbranch_scc1 L_prep_end
    """)
    k.kptr(4, "ws")
    k("""
    v_lshrrev_b32 v1, 6, v0
    v_and_b32 v2, 63, v0           ; lane
    s_nop 0
    v_readfirstlane_b32 s3, v1     ; wave
    s_cmp_ge_u32 s2, 240
    s_cbranch_scc1 L_prep_h1
    s_cmp_ge_u32 s2, 200
    s_cbranch_scc1 L_prep_wd
    s_cmp_ge_u32 s2, 160
    s_cbranch_scc1 L_prep_wo
    s_cmp_ge_u32 s2, 64
    s_cbranch_scc1 L_prep_w2
    """)
    k.kptr(6, "wqkv")
    k("""
    s_lshr_b32 s30, s2, 2          ; g
    s_and_b32 s31, s2, 3           ; T
    s_lshr_b32 s32, s31, 1
    s_lshl_b32 s33, s30, 1
    s_add_u32 s33, s33, s32        ; head = 2g + (T>>1)
    s_mul_i32 s33, s33, 20         ; head*20
    s_and_b32 s34, s31, 1
    s_lshl_b32 s34, s34, 5         ; 32*(T&1)
    v_and_b32 v3, 31, v2
    v_add_u32 v3, s34, v3          ; sl' 0..63
    v_add_u32 v4, s33, v3          ; Q col
    v_add_u32 v5, 616, v4          ; K col (640-24)
    v_add_u32 v6, 1236, v4         ; V col (1280-44)
    v_cmp_gt_u32 vcc, 44, v3
    s_nop 1
    v_cndmask_b32 v6, v6, v5, vcc  ; sl'<44 ? K : V
    v_cmp_gt_u32 vcc, 24, v3
    s_nop 1
    v_mov_b32 v7, 0x20000000
    v_cndmask_b32 v6, v6, v7, vcc
    v_cmp_gt_u32 vcc, 20, v3
    s_nop 1
    v_cndmask_b32 v6, v6, v4, vcc  ; sl'<20 -> Q
    v_lshlrev_b32 v6, 1, v6
    v_lshrrev_b32 v7, 5, v2        ; h
    s_mov_b32 s35, 8*3840
    v_mul_lo_u32 v7, v7, s35
    v_add_u32 v6, v6, v7           ; voffset
    s_waitcnt lgkmcnt(0)
    """)
    k.srd(8, 6, 640*3840)
    k.wsrd(12, 4, "W1")
    k("""
    v_lshlrev_b32 v8, 4, v2        ; lane*16
    s_mul_i32 s36, s30, 160*1024
    s_lshl_b32 s37, s31, 10
    s_add_u32 s36, s36, s37
    """)
    pure_copy(k, nsteps_per_wave=10, rowstride=3840, rows_per_step=16, dst_step=4096, rowmap=None)
    k("s_branch L_prep_end")

    k("L_prep_wo:")
    k.kptr(6, "wo")
    k("""
    s_sub_u32 s30, s2, 160
    s_mul_i32 s31, s30, 13108
    s_lshr_b32 s31, s31, 16        ; j
    s_mul_i32 s32, s31, 5
    s_sub_u32 s32, s30, s32        ; T
    v_and_b32 v3, 15, v2           ; slot
    s_mul_i32 s33, s31, 80
    s_lshl_b32 s34, s32, 4
    s_add_u32 s33, s33, s34
    v_add_u32 v6, s33, v3
    v_lshlrev_b32 v6, 1, v6        ; col*2
    v_lshrrev_b32 v7, 4, v2        ; q
    s_waitcnt lgkmcnt(0)
    """)
    k.srd(8, 6, 640*1280)
    k.wsrd(12, 4, "WO")
    k("""
    v_lshlrev_b32 v8, 4, v2
    s_mul_i32 s36, s31, 100*1024
    s_lshl_b32 s37, s32, 10
    s_add_u32 s36, s36, s37
    """)
    for it in range(5):
        k(f"""
        s_lshl_b32 s40, s3, 2
        s_add_u32 s40, s40, {it*16}
        v_add_u32 v9, s40, v7             ; p
        s_mov_b32 s41, 13108
        v_mul_lo_u32 v10, v9, s41
        v_lshrrev_b32 v10, 16, v10        ; g
        v_mul_u32_u24 v11, 5, v10
        v_sub_u32 v11, v9, v11            ; pp
        v_mul_u32_u24 v10, 40, v10        ; 40g
        v_and_b32 v12, 1, v11
        v_lshlrev_b32 v12, 2, v12         ; 4*(pp&1)
        v_lshrrev_b32 v13, 1, v11
        v_mul_u32_u24 v13, 20, v13        ; 20*(pp>>1)
        v_add_u32 v12, v12, v13
        v_add_u32 v13, 8, v12             ; base1
        v_cmp_eq_u32 vcc, 4, v11
        s_nop 1
        v_mov_b32 v14, 16
        v_cndmask_b32 v12, v12, v14, vcc
        v_mov_b32 v14, 36
        v_cndmask_b32 v13, v13, v14, vcc
        v_add_u32 v12, v12, v10
        v_add_u32 v13, v13, v10
        v_mul_u32_u24 v12, 1280, v12
        v_mul_u32_u24 v13, 1280, v13
        v_add_u32 v12, v12, v6
        v_add_u32 v13, v13, v6
        """)
        for j in range(8):
            base = "v12" if j < 4 else "v13"
            k(f"buffer_load_ushort v{100 + 8*it + j}, {base}, s[8:11], 0 offen offset:{(j%4)*1280}")
    k("s_waitcnt vmcnt(0)")
    for it in range(5):
        d = 20 + 4*it
        for r in range(4):
            k(f"v_lshl_or_b32 v{d+r}, v{100+8*it+2*r+1}, 16, v{100+8*it+2*r}")
        k(f"s_add_u32 s40, s3, {4*it}")
        k(f"s_mul_i32 s40, s40, 5120")
        k(f"s_add_u32 s40, s40, s36")
        k(f"buffer_store_dwordx4 v[{d}:{d+3}], v8, s[12:15], s40 offen")
    k("s_branch L_prep_end")

    k("L_prep_wd:")
    k.kptr(6, "wd")
    k("""
    s_sub_u32 s30, s2, 200
    s_mul_i32 s31, s30, 13108
    s_lshr_b32 s31, s31, 16        ; j
    s_mul_i32 s32, s31, 5
    s_sub_u32 s32, s30, s32        ; T
    v_and_b32 v3, 15, v2           ; slot
    s_mul_i32 s33, s31, 80
    s_lshl_b32 s34, s32, 4
    s_add_u32 s33, s33, s34
    v_add_u32 v6, s33, v3
    v_lshlrev_b32 v6, 1, v6        ; col*2
    v_lshrrev_b32 v7, 4, v2        ; q
    ; row(j) = 32 s + 16*(q>>1) + 4*(q&1) + j (j<4) ; +8 + (j-4) (j>=4)
    v_lshrrev_b32 v9, 1, v7
    v_lshlrev_b32 v9, 4, v9
    v_and_b32 v10, 1, v7
    v_lshlrev_b32 v10, 2, v10
    v_add_u32 v9, v9, v10
    v_mul_u32_u24 v9, 1280, v9
    v_add_u32 v12, v6, v9          ; rows +0..3
    v_add_u32 v13, 8*1280, v12     ; rows +8..11
    s_waitcnt lgkmcnt(0)
    """)
    k.srd(8, 6, 1536*1280)
    k.wsrd(12, 4, "WD")
    k("""
    v_lshlrev_b32 v8, 4, v2
    s_mul_i32 s36, s31, 240*1024
    s_lshl_b32 s37, s32, 10
    s_add_u32 s36, s36, s37
    """)
    for half in range(2):
        for it in range(6):
            st = half*6 + it
            k(f"s_add_u32 s40, s3, {4*st}")
            k(f"s_mul_i32 s41, s40, {32*1280}")
            for j in range(8):
                base = "v12" if j < 4 else "v13"
                k(f"buffer_load_ushort v{100 + 8*it + j}, {base}, s[8:11], s41 offen offset:{(j%4)*1280}")
        k("s_waitcnt vmcnt(0)")
        for it in range(6):
            st = half*6 + it
            d = 20 + 4*it
            for r in range(4):
                k(f"v_lshl_or_b32 v{d+r}, v{100+8*it+2*r+1}, 16, v{100+8*it+2*r}")
            k(f"s_add_u32 s40, s3, {4*st}")
            k(f"s_mul_i32 s40, s40, 5120")
            k(f"s_add_u32 s40, s40, s36")
            k(f"buffer_store_dwordx4 v[{d}:{d+3}], v8, s[12:15], s40 offen")
        k("s_nop 1")
    k("s_branch L_prep_end")

    k("L_prep_w2:")
    k.kptr(6, "wg"); k.kptr(16, "wu")
    k("""
    s_sub_u32 s30, s2, 64
    s_mul_i32 s31, s30, 10923      ; /6 (id<96)
    s_lshr_b32 s31, s31, 16        ; j
    s_mul_i32 s32, s31, 6
    s_sub_u32 s32, s30, s32        ; T
    v_and_b32 v3, 31, v2           ; slot
    v_lshrrev_b32 v4, 4, v3
    v_lshlrev_b32 v4, 3, v4
    v_and_b32 v5, 7, v3
    v_add_u32 v4, v4, v5
    s_mul_i32 s33, s31, 96
    s_lshl_b32 s34, s32, 4
    s_add_u32 s33, s33, s34
    v_add_u32 v4, s33, v4
    v_lshlrev_b32 v6, 1, v4        ; col*2
    v_lshrrev_b32 v7, 5, v2        ; h
    s_mov_b32 s35, 8*3072
    v_mul_lo_u32 v9, v7, s35
    v_add_u32 v6, v6, v9           ; voffset
    v_and_b32 v9, 8, v2
    v_cmp_eq_u32 s[44:45], 0, v9
    v_cmp_ne_u32 s[46:47], 0, v9
    v_lshlrev_b32 v10, 5, v7
    s_waitcnt lgkmcnt(0)
    """)
    k.srd(8, 6, 640*3072)
    k.srd(20, 16, 640*3072)
    k.wsrd(12, 4, "W2")
    k.wsrd(24, 4, "MOD")
    k("""
    v_lshlrev_b32 v8, 4, v2
    s_mul_i32 s36, s31, 240*1024
    s_lshl_b32 s37, s32, 10
    s_add_u32 s36, s36, s37        ; dest: j*240K + T*1K (+ s*6K)
    v_mov_b32 v14, 0               ; cs
    v_mov_b32 v15, 0               ; bs
    s_mov_b32 s38, 0               ; it
    L_prep_w2_loop:
    s_lshl_b32 s39, s38, 2
    s_add_u32 s39, s39, s3
    s_mul_i32 s40, s39, 16*3072
    s_lshl_b32 s42, s39, 6         ; s*64 bytes
    s_add_u32 s43, s42, 4*640*4    ; c2
    buffer_load_dwordx4 v[40:43], v10, s[24:27], s43 offen
    buffer_load_dwordx4 v[44:47], v10, s[24:27], s43 offen offset:16
    s_add_u32 s43, s42, 3*640*4    ; sb
    buffer_load_dwordx4 v[48:51], v10, s[24:27], s43 offen
    buffer_load_dwordx4 v[52:55], v10, s[24:27], s43 offen offset:16
    """)
    k("s_mov_b64 exec, s[44:45]")
    for j in range(8):
        k(f"s_add_u32 s41, s40, {j*3072}")
        k(f"buffer_load_ushort v{20+j}, v6, s[8:11], s41 offen")
    k("s_mov_b64 exec, s[46:47]")
    for j in range(8):
        k(f"s_add_u32 s41, s40, {j*3072}")
        k(f"buffer_load_ushort v{20+j}, v6, s[20:23], s41 offen")
    k("s_mov_b64 exec, -1")
    k("s_waitcnt vmcnt(0)")
    for j in range(8):
        k(f"v_lshlrev_b32 v{20+j}, 16, v{20+j}")
    for j in range(8):
        k(f"v_fmac_f32 v15, v{48+j}, v{20+j}")
        k(f"v_mul_f32 v{20+j}, v{40+j}, v{20+j}")
    for r in range(4):
        k(f"v_cvt_pk_bf16_f32 v{30+r}, v{20+2*r}, v{21+2*r}")
    for r in range(4):
        k(f"v_lshlrev_b32 v34, 16, v{30+r}")
        k(f"v_and_b32 v35, 0xffff0000, v{30+r}")
        k(f"v_add_f32 v14, v14, v34")
        k(f"v_add_f32 v14, v14, v35")
    k(f"""
    s_mul_i32 s40, s39, 6144
    s_add_u32 s40, s40, s36
    buffer_store_dwordx4 v[30:33], v8, s[12:15], s40 offen
    s_add_u32 s38, s38, 1
    s_cmp_lt_u32 s38, 10
    s_waitcnt vmcnt(0)
    s_cbranch_scc1 L_prep_w2_loop
    v_mov_b32 v16, v14
    v_mov_b32 v17, v15
    s_nop 1
    v_permlane32_swap_b32 v14, v16
    v_permlane32_swap_b32 v15, v17
    s_nop 1
    v_add_f32 v14, v14, v16
    v_add_f32 v15, v15, v17
    v_and_b32 v3, 31, v2
    v_lshlrev_b32 v4, 3, v3        ; slot*8
    s_lshl_b32 s39, s3, 8          ; wave*256
    v_add_u32 v4, s39, v4
    ds_write_b64 v4, v[14:15]
    s_waitcnt lgkmcnt(0)
    s_barrier
    s_cmp_lg_u32 s3, 0
    s_cbranch_scc1 L_prep_end
    v_lshlrev_b32 v4, 3, v3
    ds_read_b64 v[14:15], v4
    ds_read_b64 v[16:17], v4 offset:256
    ds_read_b64 v[18:19], v4 offset:512
    ds_read_b64 v[20:21], v4 offset:768
    s_waitcnt lgkmcnt(0)
    v_add_f32 v14, v14, v16
    v_add_f32 v15, v15, v17
    v_add_f32 v18, v18, v20
    v_add_f32 v19, v19, v21
    v_add_f32 v14, v14, v18
    v_add_f32 v15, v15, v19
    """)
    k.wsrd(52, 4, "CB2")
    k("""
    v_lshrrev_b32 v4, 2, v3
    v_lshlrev_b32 v4, 5, v4
    v_and_b32 v5, 3, v3
    v_lshlrev_b32 v5, 2, v5
    v_add_u32 v4, v4, v5
    s_lshl_b32 s39, s31, 11
    s_lshl_b32 s40, s32, 8
    s_add_u32 s39, s39, s40
    v_cmp_gt_u32 vcc, 32, v2
    s_and_saveexec_b64 s[48:49], vcc
    buffer_store_dword v14, v4, s[52:55], s39 offen
    buffer_store_dword v15, v4, s[52:55], s39 offen offset:16
    s_branch L_prep_end
    """)

    k("L_prep_h1:")
    k.kptr(6, "x")
    k("""
    s_sub_u32 s30, s2, 240         ; R32
    v_and_b32 v3, 31, v2
    v_lshrrev_b32 v7, 5, v2        ; h
    s_lshl_b32 s31, s30, 5
    v_add_u32 v4, s31, v3          ; token
    v_mul_u32_u24 v4, 1280, v4
    v_lshlrev_b32 v5, 4, v7        ; h*16 bytes
    v_add_u32 v4, v4, v5
    s_mul_i32 s32, s3, 320
    v_add_u32 v4, s32, v4
    v_lshlrev_b32 v10, 5, v7
    s_waitcnt lgkmcnt(0)
    """)
    k.srd(8, 6, 2048*1280)
    k.wsrd(12, 4, "H1")
    k.wsrd(24, 4, "MOD")
    for it in range(10):
        k(f"buffer_load_dwordx4 v[{20+4*it}:{23+4*it}], v4, s[8:11], 0 offen offset:{it*32}")
    k("s_waitcnt vmcnt(0)")
    for r in range(40):
        k(f"v_lshlrev_b32 v{64+2*r}, 16, v{20+r}")
        k(f"v_and_b32 v{65+2*r}, 0xffff0000, v{20+r}")
    k("v_mov_b32 v14, 0\nv_mov_b32 v15, 0")
    for e in range(0, 80, 2):
        k(f"v_add_f32 v14, v14, v{64+e}")
        k(f"v_add_f32 v15, v15, v{65+e}")
    k("""
    v_add_f32 v14, v14, v15
    v_mov_b32 v16, v14
    s_nop 1
    v_permlane32_swap_b32 v14, v16
    s_nop 1
    v_add_f32 v14, v14, v16
    v_lshlrev_b32 v5, 2, v3        ; token*4
    s_lshl_b32 s33, s3, 7          ; wave*128
    v_add_u32 v6, s33, v5
    ds_write_b32 v6, v14
    s_waitcnt lgkmcnt(0)
    s_barrier
    ds_read_b32 v14, v5
    ds_read_b32 v15, v5 offset:128
    ds_read_b32 v16, v5 offset:256
    ds_read_b32 v17, v5 offset:384
    s_waitcnt lgkmcnt(0)
    v_add_f32 v14, v14, v15
    v_add_f32 v16, v16, v17
    v_add_f32 v14, v14, v16
    """)
    k(f"v_mul_f32 v14, {fhex(1.0/640)}, v14     ; mean")
    for e in range(80):
        k(f"v_sub_f32 v{64+e}, v{64+e}, v14")
    k("v_mov_b32 v15, 0\nv_mov_b32 v16, 0")
    for e in range(0, 80, 2):
        k(f"v_fmac_f32 v15, v{64+e}, v{64+e}")
        k(f"v_fmac_f32 v16, v{65+e}, v{65+e}")
    k("""
    v_add_f32 v15, v15, v16
    v_mov_b32 v16, v15
    s_nop 1
    v_permlane32_swap_b32 v15, v16
    s_nop 1
    v_add_f32 v15, v15, v16
    ds_write_b32 v6, v15 offset:512
    s_waitcnt lgkmcnt(0)
    s_barrier
    ds_read_b32 v15, v5 offset:512
    ds_read_b32 v16, v5 offset:640
    ds_read_b32 v17, v5 offset:768
    ds_read_b32 v18, v5 offset:896
    s_waitcnt lgkmcnt(0)
    v_add_f32 v15, v15, v16
    v_add_f32 v17, v17, v18
    v_add_f32 v15, v15, v17
    """)
    k(f"v_mul_f32 v15, {fhex(1.0/640)}, v15")
    k(f"v_add_f32 v15, {fhex(1e-5)}, v15")
    k("v_rsq_f32 v15, v15\ns_nop 0")
    k("v_lshlrev_b32 v8, 4, v2")
    for it in range(10):
        k(f"""
        s_mul_i32 s34, s3, 640
        s_add_u32 s34, s34, {it*64}       ; s*64 bytes
        s_add_u32 s35, s34, 2560
        buffer_load_dwordx4 v[20:23], v10, s[24:27], s34 offen
        buffer_load_dwordx4 v[24:27], v10, s[24:27], s34 offen offset:16
        buffer_load_dwordx4 v[28:31], v10, s[24:27], s35 offen
        buffer_load_dwordx4 v[32:35], v10, s[24:27], s35 offen offset:16
        s_waitcnt vmcnt(0)
        """)
        for e in range(8):
            r = 64 + 8*it + e
            k(f"v_mul_f32 v{r}, v{r}, v15")
        for e in range(8):
            r = 64 + 8*it + e
            if e % 2 == 0:
                k(f"v_cvt_pk_bf16_f32 v36, v{r}, v{r+1}")
                k(f"v_lshlrev_b32 v{r}, 16, v36")
                k(f"v_and_b32 v{r+1}, 0xffff0000, v36")
        for e in range(8):
            r = 64 + 8*it + e
            k(f"v_fma_f32 v{r}, v{r}, v{28+e}, v{20+e}")
        for e in range(0, 8, 2):
            r = 64 + 8*it + e
            k(f"v_cvt_pk_bf16_f32 v{40+e//2}, v{r}, v{r+1}")
        k(f"""
        s_mul_i32 s34, s30, 40
        s_mul_i32 s35, s3, 10
        s_add_u32 s34, s34, s35
        s_add_u32 s34, s34, {it}
        s_lshl_b32 s34, s34, 10
        buffer_store_dwordx4 v[40:43], v8, s[12:15], s34 offen
        s_nop 1
        """)
    k("""
    L_prep_end:
    s_endpgm
    """)
    return k.text(), NWG, 256, 4096, 160, 160

def pure_copy(k, nsteps_per_wave, rowstride, rows_per_step, dst_step, rowmap):
    for half in range(2):
        n = nsteps_per_wave // 2
        for it in range(n):
            st = half*n + it
            k(f"s_add_u32 s40, s3, {4*st}")
            k(f"s_mul_i32 s41, s40, {rows_per_step*rowstride}")
            for j in range(8):
                k(f"s_add_u32 s42, s41, {j*rowstride}")
                k(f"buffer_load_ushort v{100 + 8*it + j}, v6, s[8:11], s42 offen")
        k("s_waitcnt vmcnt(0)")
        for it in range(n):
            st = half*n + it
            d = 20 + 4*it
            for r in range(4):
                k(f"v_lshl_or_b32 v{d+r}, v{100+8*it+2*r+1}, 16, v{100+8*it+2*r}")
            k(f"s_add_u32 s40, s3, {4*st}")
            k(f"s_mul_i32 s40, s40, {dst_step}")
            k(f"s_add_u32 s40, s40, s36")
            k(f"buffer_store_dwordx4 v[{d}:{d+3}], v8, s[12:15], s40 offen")
        k("s_nop 1")

def gemm_a_main(k, NT, D, ACC, WF, sX, sXoff, sW, sWoff, sWave, extra_older=0):
    NS = 10
    KS = 4
    SB = KS*NT*1024
    nW = KS*NT//4
    per = KS + nW
    assert D*SB <= 160*1024
    def lds_addr(slot, idx):
        off = slot*SB + idx*1024
        base = off // 65536
        return f"v{3+base}", off - base*65536
    def issue(i):
        k(f"s_add_u32 s60, s{sXoff}, {i*KS*1024}")
        for ss in range(KS):
            a = (i*KS+ss)*4
            k(f"buffer_load_dwordx4 a[{a}:{a+3}], v3, s[{sX}:{sX+3}], s60 offen offset:{ss*1024}")
        slot = i % D
        k(f"s_add_u32 s61, s{sWoff}, {i*SB}")
        k(f"s_add_u32 s61, s61, s62")
        k(f"s_add_u32 m0, s62, {slot*SB}")
        done = 0
        while done < nW:
            n = min(4, nW-done)
            if done:
                k(f"s_add_u32 s61, s61, 4096")
                k(f"s_add_u32 m0, m0, 4096")
            k("s_nop 0")
            for q in range(n):
                k(f"buffer_load_dwordx4 v3, s[{sW}:{sW+3}], s61 offen offset:{q*1024} lds")
            done += n
    k(f"s_mul_i32 s62, s{sWave}, {nW*1024}")
    for i in range(min(D, NS)):
        issue(i)
    issued = min(D, NS)
    def reads(i, ss, buf):
        for T in range(NT):
            v, off = lds_addr(i % D, ss*NT+T)
            r = WF + buf*NT*4 + T*4
            k(f"ds_read_b128 v[{r}:{r+3}], {v} offset:{off}")
    k(f"s_waitcnt vmcnt({(issued-1)*per})")
    k("s_barrier")
    reads(0, 0, 0)
    buf = 0
    for i in range(NS):
        for ss in range(KS):
            last = (ss == KS-1)
            if not last:
                reads(i, ss+1, buf ^ 1)
                k(f"s_waitcnt lgkmcnt({NT})")
            else:
                if i+1 < NS:
                    n_after = (issued - (i+2)) * per
                    k(f"s_waitcnt vmcnt({n_after}) lgkmcnt(0)")
                    k("s_barrier")
                    if issued < NS:
                        issue(issued); issued += 1
                    reads(i+1, 0, buf ^ 1)
                else:
                    k("s_waitcnt lgkmcnt(0)")
            a = (i*KS+ss)*4
            for T in range(NT):
                r = WF + buf*NT*4 + T*4
                c = f"v[{ACC+16*T}:{ACC+16*T+15}]"
                src = "0" if (i == 0 and ss == 0) else c
                k(f"v_mfma_f32_32x32x16_bf16 {c}, v[{r}:{r+3}], a[{a}:{a+3}], {src}")
            buf ^= 1
    k("s_nop 15")

def wgmap_4x8(k, sM, sN):
    k(f"""
    s_and_b32 s50, s2, 7
    s_lshr_b32 s51, s2, 3
    s_lshr_b32 s{sM}, s50, 1
    s_lshl_b32 s{sM}, s{sM}, 2
    s_and_b32 s52, s51, 3
    s_add_u32 s{sM}, s{sM}, s52
    s_and_b32 s{sN}, s50, 1
    s_lshl_b32 s{sN}, s{sN}, 3
    s_lshr_b32 s52, s51, 2
    s_add_u32 s{sN}, s{sN}, s52
    """)

def k_qkv():
    k = K("qkv")
    NWG = 256
    ACC, WF = 64, 16
    k(f"""
    s_cmp_ge_u32 s2, {NWG}
    s_cbranch_scc1 L_qkv_end
    """)
    k.kptr(4, "ws")
    k("""
    v_lshrrev_b32 v1, 6, v0
    v_and_b32 v2, 63, v0
    v_lshlrev_b32 v3, 4, v2
    v_readfirstlane_b32 s3, v1     ; wave
    v_add_u32 v4, 0x10000, v3
    v_add_u32 v5, 0x20000, v3
    """)
    wgmap_4x8(k, 30, 31)
    k("s_waitcnt lgkmcnt(0)")
    k.wsrd(8, 4, "H1"); k.wsrd(12, 4, "W1")
    k("""
    s_lshl_b32 s32, s30, 2
    s_add_u32 s32, s32, s3         ; R32
    s_mul_i32 s33, s32, 40*1024    ; X offset
    s_mul_i32 s34, s31, 160*1024   ; W offset
    """)
    gemm_a_main(k, 4, 7, ACC, WF, 8, 33, 12, 34, 3)
    k.wsrd(16, 4, "QF1"); k.wsrd(20, 4, "QF2"); k.wsrd(24, 4, "KF1"); k.wsrd(28+8, 4, "KF2"); k.wsrd(40, 4, "VR")
    k("""
    v_lshlrev_b32 v6, 3, v2        ; lane*8
    v_lshrrev_b32 v7, 5, v2        ; h
    v_and_b32 v8, 31, v2
    s_lshl_b32 s44, s32, 5
    v_add_u32 v8, s44, v8          ; token
    v_lshlrev_b32 v8, 6, v8        ; token*64
    v_cmp_eq_u32 s[46:47], 0, v7   ; h==0 lanes
    """)
    for hd in range(2):
        t0 = ACC + 32*hd; t1 = t0 + 16
        P = 16
        for r in range(4): k(f"v_cvt_pk_bf16_f32 v{P+r}, v{t0+2*r}, v{t0+2*r+1}")
        for r in range(2): k(f"v_cvt_pk_bf16_f32 v{P+4+r}, v{t0+8+2*r}, v{t0+9+2*r}")
        for r in range(2): k(f"v_cvt_pk_bf16_f32 v{P+8+r}, v{t0+12+2*r}, v{t0+13+2*r}")
        for r in range(2): k(f"v_cvt_pk_bf16_f32 v{P+10+r}, v{t1+2*r}, v{t1+2*r+1}")
        for r in range(6): k(f"v_cvt_pk_bf16_f32 v{P+12+r}, v{t1+4+2*r}, v{t1+5+2*r}")
        k(f"""
        s_lshl_b32 s45, s31, 1
        s_add_u32 s45, s45, {hd}        ; head
        s_lshl_b32 s48, s45, 6
        s_add_u32 s48, s48, s32         ; head*64 + R32
        s_lshl_b32 s49, s48, 10
        s_lshl_b32 s53, s48, 9
        buffer_store_dwordx4 v[{P}:{P+3}], v3, s[16:19], s49 offen
        buffer_store_dwordx2 v[{P+4}:{P+5}], v6, s[20:23], s53 offen
        buffer_store_dwordx4 v[{P+8}:{P+11}], v3, s[24:27], s49 offen
        buffer_store_dwordx2 v[{P+12}:{P+13}], v6, s[36:39], s53 offen
        s_lshl_b32 s54, s45, 17         ; head*2048*64
        v_mov_b32 v{P+20}, 0x3f80
        v_mov_b32 v{P+21}, 0
        v_cndmask_b32 v{P+18}, v{P+12}, v{P+20}, s[46:47]
        v_cndmask_b32 v{P+19}, v{P+13}, v{P+21}, s[46:47]
        v_mov_b32 v9, 40
        v_cndmask_b32 v9, 0, v9, s[46:47]
        v_add_u32 v9, v8, v9
        buffer_store_dwordx2 v[{P+18}:{P+19}], v9, s[40:43], s54 offen
        v_lshlrev_b32 v9, 3, v7
        v_add_u32 v9, v8, v9
        buffer_store_dwordx2 v[{P+14}:{P+15}], v9, s[40:43], s54 offen offset:8
        buffer_store_dwordx2 v[{P+16}:{P+17}], v9, s[40:43], s54 offen offset:24
        v_cndmask_b32 v{P+22}, 0, v{P+20}, s[46:47]
        v_mov_b32 v{P+23}, 0
        buffer_store_dwordx2 v[{P+22}:{P+23}], v9, s[40:43], s54 offen offset:48
        s_nop 1
        """)
    k("""
    L_qkv_end:
    s_endpgm
    """)
    return k.text(), NWG, 256, 7*16384, 128+160, 128

def attn_core(k, S, Q1, Q2, O, TMP, vK1, vK2, vV, sFirst, MASK):
    NEG = fhex(-1e30)
    for t in range(9):
        skip = k.lab("skipqk"); done = k.lab("doneqk")
        if t < 8:
            k(f"s_cmp_gt_u32 s{sFirst}, {t}")
            k(f"s_cbranch_scc1 {skip}")
        b = TMP + (t % 2)*6
        k(f"ds_read_b128 v[{b}:{b+3}], {vK1} offset:{t*1024}")
        k(f"ds_read_b64 v[{b+4}:{b+5}], {vK2} offset:{t*512}")
        k("s_waitcnt lgkmcnt(0)")
        s = S + 16*t
        k(f"v_mfma_f32_32x32x16_bf16 v[{s}:{s+15}], v[{b}:{b+3}], v[{Q1}:{Q1+3}], 0")
        k(f"v_mfma_f32_32x32x8_bf16 v[{s}:{s+15}], v[{b+4}:{b+5}], v[{Q2}:{Q2+1}], v[{s}:{s+15}]")
        if t < 8:
            k(f"s_branch {done}")
            k(f"{skip}:")
            for r in range(16):
                k(f"v_mov_b32 v{s+r}, {NEG}")
            k(f"{done}:")
    k("s_nop 15")
    k(f"v_mov_b32 v{TMP}, {NEG}")
    for r in range(16):
        m = f"s[{MASK+2*r}:{MASK+2*r+1}]"
        k(f"v_cndmask_b32 v{S+128+r}, v{TMP}, v{S+128+r}, {m}")
        k(f"v_cndmask_b32 v{S+r}, v{S+r}, v{TMP}, {m}")
    mx = TMP + 1
    k(f"v_max3_f32 v{mx}, v{S}, v{S+1}, v{S+2}")
    k(f"v_max3_f32 v{mx+1}, v{S+3}, v{S+4}, v{S+5}")
    e = 6
    while e + 3 < 144:
        k(f"v_max3_f32 v{mx}, v{mx}, v{S+e}, v{S+e+1}")
        k(f"v_max3_f32 v{mx+1}, v{mx+1}, v{S+e+2}, v{S+e+3}")
        e += 4
    k(f"v_max3_f32 v{mx}, v{mx}, v{S+142}, v{S+143}")
    k(f"v_max_f32 v{mx}, v{mx}, v{mx+1}")
    k(f"v_mov_b32 v{mx+1}, v{mx}")
    k("s_nop 1")
    k(f"v_permlane32_swap_b32 v{mx}, v{mx+1}")
    k("s_nop 1")
    k(f"v_max_f32 v{mx}, v{mx}, v{mx+1}")
    C = LOG2E * 20 ** -0.5
    k(f"s_mov_b32 s58, {fhex(C)}")
    k(f"v_mul_f32 v{mx}, s58, v{mx}")
    first = True
    for t in range(9):
        skip = k.lab("skippv")
        if t < 8:
            k(f"s_cmp_gt_u32 s{sFirst}, {t}")
            k(f"s_cbranch_scc1 {skip}")
        s = S + 16*t
        vb = TMP + 4 + (t % 2)*8
        for st in range(2):
            k(f"ds_read_b64_tr_b16 v[{vb+4*st}:{vb+4*st+1}], {vV} offset:{t*2048 + st*1024}")
            k(f"ds_read_b64_tr_b16 v[{vb+4*st+2}:{vb+4*st+3}], {vV} offset:{t*2048 + st*1024 + 512}")
        for r in range(16):
            k(f"v_fma_f32 v{s+r}, v{s+r}, s58, -v{mx}")
        for r in range(16):
            k(f"v_exp_f32 v{s+r}, v{s+r}")
        k("s_nop 0")
        for r in range(8):
            k(f"v_cvt_pk_bf16_f32 v{s+r}, v{s+2*r}, v{s+2*r+1}")
        k("s_waitcnt lgkmcnt(0)")
        k("s_nop 0")
        k(f"v_mfma_f32_32x32x16_bf16 v[{O}:{O+15}], v[{vb}:{vb+3}], v[{s}:{s+3}], v[{O}:{O+15}]")
        k(f"v_mfma_f32_32x32x16_bf16 v[{O}:{O+15}], v[{vb+4}:{vb+7}], v[{s+4}:{s+7}], v[{O}:{O+15}]")
        if t < 8:
            k(f"{skip}:")
    k("s_nop 15")

def attn_masks(k, MASK, vlane, vtmp):
    k(f"""
    v_and_b32 v{vtmp}, 31, v{vlane}
    v_lshrrev_b32 v{vtmp+1}, 5, v{vlane}
    v_lshlrev_b32 v{vtmp+1}, 2, v{vtmp+1}
    v_sub_u32 v{vtmp}, v{vtmp}, v{vtmp+1}
    """)
    for r in range(16):
        c = 8*(r >> 2) + (r & 3)
        k(f"v_cmp_le_i32 s[{MASK+2*r}:{MASK+2*r+1}], {c}, v{vtmp}")

def k_attn():
    k = K("attn")
    NWG = 256
    HB = 42*1024
    k(f"""
    s_cmp_ge_u32 s2, {NWG}
    s_cbranch_scc1 L_attn_end
    """)
    k.kptr(4, "ws")
    k("""
    v_lshrrev_b32 v1, 6, v0
    v_and_b32 v2, 63, v0
    v_lshlrev_b32 v3, 4, v2        ; lane*16
    v_readfirstlane_b32 s3, v1     ; wave 0..7
    """)
    wgmap_4x8(k, 30, 31)
    k("""
    s_and_b32 s32, s3, 3           ; w
    s_lshr_b32 s33, s3, 2          ; hd
    s_lshl_b32 s34, s31, 1
    s_add_u32 s34, s34, s33        ; head
    s_waitcnt lgkmcnt(0)
    """)
    k.wsrd(8, 4, "QF1"); k.wsrd(12, 4, "QF2"); k.wsrd(16, 4, "KF1"); k.wsrd(20, 4, "KF2"); k.wsrd(24, 4, "VR"); k.wsrd(40, 4, "O")
    Q1, Q2 = 8, 12
    k(f"""
    s_lshl_b32 s35, s30, 2
    s_add_u32 s36, s35, s32        ; qt = 4b + w
    s_lshl_b32 s37, s34, 6         ; head*64
    s_add_u32 s38, s37, s36
    s_lshl_b32 s39, s38, 10
    s_lshl_b32 s38, s38, 9
    v_lshlrev_b32 v6, 3, v2        ; lane*8
    buffer_load_dwordx4 v[{Q1}:{Q1+3}], v3, s[8:11], s39 offen
    buffer_load_dwordx2 v[{Q2}:{Q2+1}], v6, s[12:15], s38 offen
    s_mul_i32 s44, s33, {HB}
    s_sub_i32 s45, s35, 8
    """)
    for i in range(3):
        k(f"""
        s_mul_i32 s46, s32, 3
        s_add_u32 s46, s46, {i}
        s_add_i32 s47, s45, s46
        s_max_i32 s47, s47, 0
        s_add_u32 s47, s47, s37
        s_lshl_b32 s47, s47, 10
        s_lshl_b32 s46, s46, 10
        s_add_u32 m0, s44, s46
        s_nop 0
        buffer_load_dwordx4 v3, s[16:19], s47 offen lds
        """)
    lab = k.lab("nok2")
    k(f"s_cmp_ge_u32 s32, 3\ns_cbranch_scc1 {lab}")
    for i in range(2):
        k(f"""
        s_lshl_b32 s46, s32, 1
        s_add_u32 s46, s46, {i}
        s_lshl_b32 s48, s46, 1
        s_add_i32 s47, s45, s48
        s_max_i32 s47, s47, 0
        s_add_u32 s47, s47, s37
        s_lshl_b32 s47, s47, 9
        s_lshl_b32 s46, s46, 10
        s_add_u32 s46, s46, 12288
        s_add_u32 m0, s44, s46
        s_nop 0
        buffer_load_dwordx4 v3, s[20:23], s47 offen lds
        """)
    k(f"{lab}:")
    for i in range(6):
        k(f"""
        s_mul_i32 s46, s32, 6
        s_add_u32 s46, s46, {i}
        s_lshl_b32 s48, s45, 1
        s_add_i32 s47, s48, s46
        s_max_i32 s47, s47, 0
        s_lshl_b32 s47, s47, 10
        s_lshl_b32 s48, s34, 17
        s_add_u32 s47, s47, s48
        s_lshl_b32 s46, s46, 10
        s_add_u32 s46, s46, 18432
        s_add_u32 m0, s44, s46
        s_nop 0
        buffer_load_dwordx4 v3, s[24:27], s47 offen lds
        """)
    S, O, TMP = 64, 16, 32
    MASK = 64
    attn_masks(k, MASK, 2, 4)
    k(f"""
    s_lshl_b32 s46, s32, 10
    s_add_u32 s46, s46, s44
    v_add_u32 v14, s46, v3             ; K1 addr
    s_lshl_b32 s46, s32, 9
    s_add_u32 s46, s46, s44
    s_add_u32 s46, s46, 12288
    v_add_u32 v15, s46, v6             ; K2 addr
    ; V addr: ((l>>5)*4 + ((l&15)>>2))*64 + ((l>>4)&1)*32 + (l&3)*8
    v_lshrrev_b32 v4, 5, v2
    v_lshlrev_b32 v4, 2, v4
    v_and_b32 v5, 15, v2
    v_lshrrev_b32 v5, 2, v5
    v_add_u32 v4, v4, v5
    v_lshlrev_b32 v4, 6, v4
    v_lshrrev_b32 v5, 4, v2
    v_and_b32 v5, 1, v5
    v_lshlrev_b32 v5, 5, v5
    v_add_u32 v4, v4, v5
    v_and_b32 v5, 3, v2
    v_lshlrev_b32 v5, 3, v5
    v_add_u32 v4, v4, v5
    s_lshl_b32 s46, s32, 11
    s_add_u32 s46, s46, s44
    s_add_u32 s46, s46, 18432
    v_add_u32 v7, s46, v4              ; V addr
    s_sub_i32 s49, 8, s36
    s_max_i32 s49, s49, 0
    """)
    for r in range(16):
        k(f"v_mov_b32 v{O+r}, 0")
    k("s_waitcnt vmcnt(0)\ns_barrier")
    attn_core(k, S, Q1, Q2, O, TMP, "v14", "v15", "v7", 49, MASK)
    k(f"""
    v_lshrrev_b32 v4, 5, v2
    v_cmp_eq_u32 s[46:47], 0, v4
    s_nop 1
    v_cndmask_b32 v5, v{O+8}, v{O+12}, s[46:47]
    v_rcp_f32 v5, v5
    s_nop 0
    """)
    for r in range(12):
        k(f"v_mul_f32 v{O+r}, v{O+r}, v5")
    for r in range(6):
        k(f"v_cvt_pk_bf16_f32 v{TMP+r}, v{O+2*r}, v{O+2*r+1}")
    k(f"""
    v_and_b32 v8, 31, v2
    s_lshl_b32 s50, s36, 5
    v_add_u32 v8, s50, v8              ; token
    v_lshrrev_b32 v9, 4, v8            ; R16
    v_mul_u32_u24 v9, 20*1024, v9
    v_and_b32 v8, 15, v8
    v_lshlrev_b32 v8, 4, v8            ; (token&15)*16
    v_add_u32 v9, v9, v8
    ; p = 5g + 2hd + h
    s_mul_i32 s50, s31, 5
    s_lshl_b32 s51, s33, 1
    s_add_u32 s51, s51, s50
    v_add_u32 v10, s51, v4             ; p
    v_lshrrev_b32 v11, 2, v10          ; s32
    v_lshlrev_b32 v11, 10, v11
    v_and_b32 v10, 3, v10
    v_lshlrev_b32 v10, 8, v10          ; q*256
    v_add3_u32 v10, v9, v10, v11
    buffer_store_dwordx4 v[{TMP}:{TMP+3}], v10, s[40:43], 0 offen
    s_add_u32 s50, s50, 4
    s_lshr_b32 s51, s50, 2
    s_lshl_b32 s51, s51, 10
    s_and_b32 s50, s50, 3
    s_lshl_b32 s50, s50, 8
    s_add_u32 s50, s50, s51
    s_lshl_b32 s51, s33, 3
    s_add_u32 s50, s50, s51
    s_mov_b64 exec, s[46:47]
    buffer_store_dwordx2 v[{TMP+4}:{TMP+5}], v9, s[40:43], s50 offen
    L_attn_end:
    s_endpgm
    """)
    return k.text(), NWG, 512, 2*HB, 224, 224

def gemm_b_main(k, KS, D, ACC, WF, sX, sXoff, sW, sWoff, sWave):
    H = KS//2
    NS = H//2
    SB = 20*1024
    per = 4 + 5
    assert D*SB <= 160*1024
    def lds_addr(slot, idx):
        off = slot*SB + idx*1024
        base = off // 65536
        return f"v{3+base}", off - base*65536
    k(f"""
    s_mul_i32 s62, s{sWave}, 5120
    s_lshr_b32 s63, s{sWave}, 1
    s_mul_i32 s63, s63, {H}
    s_and_b32 s60, s{sWave}, 1
    s_add_u32 s63, s63, s60
    s_mul_i32 s63, s63, 5120
    s_add_u32 s63, s63, s{sWoff}
    """)
    def issue(i):
        for tt in range(2):
            k(f"s_add_u32 s60, s{sXoff}, {tt*KS*1024 + i*2048}")
            for ss in range(2):
                a = (tt*H + i*2 + ss)*4
                k(f"buffer_load_dwordx4 a[{a}:{a+3}], v3, s[{sX}:{sX+3}], s60 offen offset:{ss*1024}")
        slot = i % D
        k(f"s_add_u32 s61, s63, {i*2*5120}")
        k(f"s_add_u32 m0, s62, {slot*SB}")
        k("s_nop 0")
        for q in range(4):
            k(f"buffer_load_dwordx4 v3, s[{sW}:{sW+3}], s61 offen offset:{q*1024} lds")
        k(f"s_add_u32 s61, s61, 4096")
        k(f"s_add_u32 m0, m0, 4096")
        k("s_nop 0")
        k(f"buffer_load_dwordx4 v3, s[{sW}:{sW+3}], s61 offen lds")
    n0 = min(D, NS)
    for i in range(n0):
        issue(i)
    issued = n0
    k(f"""
    s_lshr_b32 s60, s{sWave}, 1
    s_mul_i32 s60, s60, 10240
    v_add_u32 v6, s60, v3
    v_add_u32 v7, 0x10000, v6
    v_add_u32 v8, 0x20000, v6
    """)
    def reads(i, ss, buf):
        for T in range(5):
            off = (i % D)*SB + (ss*5+T)*1024
            base = off // 65536
            r = WF + buf*20 + T*4
            k(f"ds_read_b128 v[{r}:{r+3}], v{6+base} offset:{off - base*65536}")
    k(f"s_waitcnt vmcnt({(issued-1)*per})")
    k("s_barrier")
    reads(0, 0, 0)
    buf = 0
    for i in range(NS):
        for ss in range(2):
            last = (ss == 1)
            if not last:
                reads(i, ss+1, buf ^ 1)
                k(f"s_waitcnt lgkmcnt(5)")
            else:
                if i+1 < NS:
                    n_after = (issued - (i+2)) * per
                    k(f"s_waitcnt vmcnt({n_after}) lgkmcnt(0)")
                    k("s_barrier")
                    if issued < NS:
                        issue(issued); issued += 1
                    reads(i+1, 0, buf ^ 1)
                else:
                    k("s_waitcnt lgkmcnt(0)")
            for tt in range(2):
                a = (tt*H + i*2 + ss)*4
                for T in range(5):
                    r = WF + buf*20 + T*4
                    c = ACC + (tt*5+T)*4
                    cs = f"v[{c}:{c+3}]"
                    src = "0" if (i == 0 and ss == 0) else cs
                    k(f"v_mfma_f32_16x16x32_bf16 {cs}, v[{r}:{r+3}], a[{a}:{a+3}], {src}")
            buf ^= 1
    k("s_nop 7")

def gemm_b_exchange(k, ACC, TMP, sWave):
    k("s_barrier")
    l1 = k.lab("xk1"); l2 = k.lab("xdone")
    k(f"""
    s_mul_i32 s60, s{sWave}, 5120
    v_add_u32 v6, s60, v3
    s_xor_b32 s61, s{sWave}, 2
    s_mul_i32 s61, s61, 5120
    v_add_u32 v7, s61, v3
    s_lshr_b32 s61, s{sWave}, 1
    s_cmp_eq_u32 s61, 1
    s_cbranch_scc1 {l1}
    """)
    for T in range(5):
        c = ACC + (5+T)*4
        k(f"ds_write_b128 v6, v[{c}:{c+3}] offset:{T*1024}")
    k(f"s_branch {l2}")
    k(f"{l1}:")
    for T in range(5):
        c = ACC + T*4
        k(f"ds_write_b128 v6, v[{c}:{c+3}] offset:{T*1024}")
    k("s_nop 1")
    for r in range(20):
        k(f"v_mov_b32 v{ACC+r}, v{ACC+20+r}")
    k(f"{l2}:")
    k("s_waitcnt lgkmcnt(0)\ns_barrier")
    for T in range(5):
        k(f"ds_read_b128 v[{TMP+4*T}:{TMP+4*T+3}], v7 offset:{T*1024}")
    k("s_waitcnt lgkmcnt(0)")
    for r in range(20):
        k(f"v_add_f32 v{ACC+r}, v{ACC+r}, v{TMP+r}")

def wgmap_b(k, sTB, sJ):
    k(f"""
    s_and_b32 s50, s2, 7
    s_lshr_b32 s51, s2, 3
    s_lshl_b32 s{sTB}, s50, 2
    s_and_b32 s52, s51, 3
    s_add_u32 s{sTB}, s{sTB}, s52
    s_lshr_b32 s{sJ}, s51, 2
    """)

def k_resid_gemm(which):
    name = which
    k = K(name)
    NWG = 256
    KS = 20 if which == "wo" else 48
    D = 5
    ACC, WF, RES, GV = 64, 16, 104, 114
    k(f"""
    s_cmp_ge_u32 s2, {NWG}
    s_cbranch_scc1 L_{name}_end
    """)
    k.kptr(4, "ws")
    k.kptr(6, "x" if which == "wo" else "out")
    k("""
    v_lshrrev_b32 v1, 6, v0
    v_and_b32 v2, 63, v0
    v_lshlrev_b32 v3, 4, v2
    v_readfirstlane_b32 s3, v1     ; wave
    v_add_u32 v4, 0x10000, v3
    v_add_u32 v5, 0x20000, v3
    """)
    wgmap_b(k, 30, 31)
    k("s_waitcnt lgkmcnt(0)")
    k.wsrd(8, 4, "O" if which == "wo" else "HH")
    k.wsrd(12, 4, "WO" if which == "wo" else "WD")
    k.srd(16, 6, 2048*1280)
    k.wsrd(20, 4, "X1")
    k.wsrd(24, 4, "MOD")
    k.wsrd(40, 4, "STAT")
    k(f"""
    s_and_b32 s32, s3, 1           ; mi
    s_lshr_b32 s33, s3, 1          ; kj
    s_lshl_b32 s34, s30, 2
    s_lshl_b32 s35, s32, 1
    s_add_u32 s34, s34, s35
    s_mul_i32 s35, s34, {KS}
    s_mul_i32 s36, s33, {KS//2}
    s_add_u32 s35, s35, s36
    s_lshl_b32 s35, s35, 10        ; X offset
    s_mul_i32 s36, s31, {KS*5*1024}   ; W offset
    s_add_u32 s37, s34, s33
    v_and_b32 v9, 15, v2
    v_lshrrev_b32 v10, 4, v2
    s_lshl_b32 s38, s37, 4
    v_add_u32 v11, s38, v9         ; token
    s_mul_i32 s39, s31, 80
    v_lshlrev_b32 v12, 2, v10
    v_add_u32 v12, s39, v12        ; n0 = 80j + 4q
    v_mul_u32_u24 v13, 1280, v11
    v_lshlrev_b32 v14, 1, v12
    v_add_u32 v13, v13, v14
    v_lshrrev_b32 v14, 5, v11
    v_mul_u32_u24 v14, 40*1024, v14
    v_and_b32 v15, 31, v11
    v_lshrrev_b32 v56, 1, v10
    v_lshlrev_b32 v56, 5, v56
    v_add_u32 v15, v15, v56
    v_lshlrev_b32 v15, 4, v15
    v_add_u32 v14, v14, v15
    v_and_b32 v15, 1, v10
    v_lshlrev_b32 v15, 3, v15
    v_add_u32 v14, v14, v15
    s_mul_i32 s44, s31, 5*1024
    v_add_u32 v14, s44, v14
    v_lshlrev_b32 v15, 2, v12
    """)
    part = 2 if which == "wo" else 5
    for T in range(5):
        if which == "wo":
            k(f"buffer_load_dwordx2 v[{RES+2*T}:{RES+2*T+1}], v13, s[16:19], 0 offen offset:{T*32}")
        else:
            k(f"s_mov_b32 s45, {T*1024}")
            k(f"buffer_load_dwordx2 v[{RES+2*T}:{RES+2*T+1}], v14, s[20:23], s45 offen")
        k(f"s_mov_b32 s45, {part*2560}")
        k(f"buffer_load_dwordx4 v[{GV+4*T}:{GV+4*T+3}], v15, s[24:27], s45 offen offset:{T*64}")
    gemm_b_main(k, KS, D, ACC, WF, 8, 35, 12, 36, 3)
    gemm_b_exchange(k, ACC, 16, 3)
    k("s_waitcnt vmcnt(0)")
    for T in range(5):
        for r in range(4):
            e = ACC + 4*T + r
            src = RES + 2*T + r//2
            if r % 2 == 0:
                k(f"v_lshlrev_b32 v16, 16, v{src}")
            else:
                k(f"v_and_b32 v16, 0xffff0000, v{src}")
            k(f"v_fma_f32 v{e}, v{e}, v{GV+4*T+r}, v16")
    for T in range(5):
        for r in range(2):
            k(f"v_cvt_pk_bf16_f32 v{20+2*T+r}, v{ACC+4*T+2*r}, v{ACC+4*T+2*r+1}")
    if which == "wo":
        for T in range(5):
            k(f"s_mov_b32 s45, {T*1024}")
            k(f"buffer_store_dwordx2 v[{20+2*T}:{21+2*T}], v14, s[20:23], s45 offen")
        k("v_mov_b32 v16, 0\nv_mov_b32 v17, 0")
        for r in range(10):
            k(f"v_lshlrev_b32 v18, 16, v{20+r}")
            k(f"v_and_b32 v19, 0xffff0000, v{20+r}")
            k(f"v_add_f32 v16, v16, v18")
            k(f"v_fmac_f32 v17, v18, v18")
            k(f"v_add_f32 v16, v16, v19")
            k(f"v_fmac_f32 v17, v19, v19")
        for sw in ("v_permlane16_swap_b32", "v_permlane32_swap_b32"):
            k(f"""
            v_mov_b32 v18, v16
            v_mov_b32 v19, v17
            s_nop 1
            {sw} v16, v18
            {sw} v17, v19
            s_nop 1
            v_add_f32 v16, v16, v18
            v_add_f32 v17, v17, v19
            """)
        k("""
        v_lshlrev_b32 v18, 6, v11          ; token*64
        s_lshl_b32 s45, s31, 3
        v_cmp_gt_u32 vcc, 16, v2
        s_and_saveexec_b64 s[46:47], vcc
        buffer_store_dwordx2 v[16:17], v18, s[40:43], s45 offen
        """)
    else:
        for T in range(5):
            k(f"buffer_store_dwordx2 v[{20+2*T}:{21+2*T}], v13, s[16:19], 0 offen offset:{T*32}")
    k(f"""
    L_{name}_end:
    s_endpgm
    """)
    nA = 2*(KS//2)*4
    return k.text(), NWG, 256, D*20*1024, 136+nA, 136

def wgmap_gu(k, sM, sN):
    k(f"""
    s_and_b32 s50, s2, 7
    s_lshr_b32 s51, s2, 3
    s_and_b32 s{sM}, s50, 1
    s_lshl_b32 s{sM}, s{sM}, 3
    s_and_b32 s52, s51, 7
    s_add_u32 s{sM}, s{sM}, s52
    s_lshr_b32 s{sN}, s50, 1
    s_lshl_b32 s{sN}, s{sN}, 2
    s_lshr_b32 s52, s51, 3
    s_add_u32 s{sN}, s{sN}, s52
    """)

def k_gu():
    k = K("gu")
    NWG = 256
    D = 5
    ACC, WF = 64, 16
    TAB = D*24*1024
    k(f"""
    s_cmp_ge_u32 s2, {NWG}
    s_cbranch_scc1 L_gu_end
    """)
    k.kptr(4, "ws")
    k("""
    v_lshrrev_b32 v1, 6, v0
    v_and_b32 v2, 63, v0
    v_lshlrev_b32 v3, 4, v2
    v_readfirstlane_b32 s3, v1     ; wave
    v_add_u32 v4, 0x10000, v3
    v_add_u32 v5, 0x20000, v3
    """)
    wgmap_gu(k, 30, 31)
    k("s_waitcnt lgkmcnt(0)")
    k.wsrd(8, 4, "X1"); k.wsrd(12, 4, "W2"); k.wsrd(16, 4, "CB2"); k.wsrd(20, 4, "STAT"); k.wsrd(24, 4, "HH")
    k(f"""
    s_lshl_b32 s32, s30, 2
    s_add_u32 s32, s32, s3         ; R32
    s_mul_i32 s33, s32, 40*1024    ; X offset
    s_mul_i32 s34, s31, 240*1024   ; W offset
    v_and_b32 v8, 31, v2
    s_lshl_b32 s35, s32, 5
    v_add_u32 v8, s35, v8          ; token
    v_lshlrev_b32 v9, 6, v8
    buffer_load_dwordx4 v[160:163], v9, s[20:23], 0 offen
    buffer_load_dwordx4 v[164:167], v9, s[20:23], 0 offen offset:16
    buffer_load_dwordx4 v[168:171], v9, s[20:23], 0 offen offset:32
    buffer_load_dwordx4 v[172:175], v9, s[20:23], 0 offen offset:48
    s_cmp_ge_u32 s3, 2
    s_cbranch_scc1 L_gu_notab
    s_lshl_b32 s36, s31, 11
    s_lshl_b32 s37, s3, 10
    s_add_u32 s36, s36, s37
    s_add_u32 m0, s37, {TAB}
    s_nop 0
    buffer_load_dwordx4 v3, s[16:19], s36 offen lds
    L_gu_notab:
    """)
    gemm_a_main(k, 6, D, ACC, WF, 8, 33, 12, 34, 3)
    k("""
    v_add_f32 v160, v160, v162
    v_add_f32 v161, v161, v163
    v_add_f32 v164, v164, v166
    v_add_f32 v165, v165, v167
    v_add_f32 v168, v168, v170
    v_add_f32 v169, v169, v171
    v_add_f32 v172, v172, v174
    v_add_f32 v173, v173, v175
    v_add_f32 v160, v160, v164
    v_add_f32 v161, v161, v165
    v_add_f32 v168, v168, v172
    v_add_f32 v169, v169, v173
    v_add_f32 v160, v160, v168
    v_add_f32 v161, v161, v169
    """)
    k(f"""
    v_mul_f32 v160, {fhex(1.0/640)}, v160       ; mu
    v_mul_f32 v161, {fhex(1.0/640)}, v161       ; E[x^2]
    v_fma_f32 v161, -v160, v160, v161           ; var
    v_max_f32 v161, 0, v161
    v_add_f32 v161, {fhex(1e-5)}, v161
    v_rsq_f32 v161, v161                        ; r
    v_lshrrev_b32 v7, 5, v2                     ; h
    v_lshlrev_b32 v6, 5, v7                     ; h*32
    v_add_u32 v6, {TAB}, v6
    v_lshrrev_b32 v9, 4, v8
    v_mul_u32_u24 v9, 48*1024, v9
    v_and_b32 v10, 15, v8
    v_lshlrev_b32 v10, 4, v10
    v_add_u32 v9, v9, v10
    v_lshlrev_b32 v10, 8, v7
    v_add_u32 v9, v9, v10
    s_mul_i32 s36, s31, 6                       ; T' base = 6j
    """)
    for T in range(6):
        acc = ACC + 16*T
        for a in range(4):
            k(f"ds_read_b128 v[{16+8*a}:{19+8*a}], v6 offset:{T*256 + a*64}")
            k(f"ds_read_b128 v[{20+8*a}:{23+8*a}], v6 offset:{T*256 + a*64 + 16}")
        k("s_waitcnt lgkmcnt(0)")
        for a in range(4):
            for r in range(4):
                e = acc + 4*a + r
                k(f"v_fma_f32 v{e}, -v160, v{16+8*a+r}, v{e}")
                k(f"v_fma_f32 v{e}, v{e}, v161, v{20+8*a+r}")
        for r in range(4):
            k(f"v_mul_f32 v{acc+r}, v{acc+r}, v{acc+4+r}")
            k(f"v_mul_f32 v{acc+8+r}, v{acc+8+r}, v{acc+12+r}")
        k(f"v_cvt_pk_bf16_f32 v48, v{acc}, v{acc+1}")
        k(f"v_cvt_pk_bf16_f32 v49, v{acc+2}, v{acc+3}")
        k(f"v_cvt_pk_bf16_f32 v50, v{acc+8}, v{acc+9}")
        k(f"v_cvt_pk_bf16_f32 v51, v{acc+10}, v{acc+11}")
        k(f"""
        s_add_u32 s37, s36, {T}
        s_lshr_b32 s38, s37, 1
        s_lshl_b32 s38, s38, 10
        s_and_b32 s37, s37, 1
        s_lshl_b32 s37, s37, 9
        s_add_u32 s38, s38, s37
        buffer_store_dwordx4 v[48:51], v9, s[24:27], s38 offen
        s_nop 1
        """)
    k("""
    L_gu_end:
    s_endpgm
    """)
    return k.text(), NWG, 256, TAB + 2048, 176+160, 176

def build(kernels):
    launches = []; body = ""; desc = ""
    for name, fn in kernels:
        text, nwg, blk, lds, nv, acc = fn()
        kn = name + "_kernel"
        launches.append((kn, nwg, blk, lds))
        body += kern_begin(kn) + text
        desc += kern_desc(kn, nv, acc)
    return header(launches) + body + '.section .rodata,"a"\n' + desc

V1 = [("mod", k_mod), ("prep", k_prep), ("qkv", k_qkv), ("attn", k_attn),
      ("wo", lambda: k_resid_gemm("wo")), ("gu", k_gu), ("down", lambda: k_resid_gemm("down"))]

if __name__ == "__main__":
    out = sys.argv[1] if len(sys.argv) > 1 else "cdna_kernels/" + NAME + ".s"
    open(out, "w").write(build(V1))
    print("written", out)
```

```python
import gen, sys
def k_empty(n):
    def f():
        return "  s_endpgm\n", 256, 256, 0, 32, 32
    return f
base = list(gen.V1)
open("var_base.s","w").write(gen.build(base))
for n in [4, 8]:
    ks = base + [(f"empty{i}", k_empty(i)) for i in range(n)]
    open(f"var_e{n}.s","w").write(gen.build(ks))
ks = [(f"empty{i}", k_empty(i)) for i in range(4)] + base
open(f"var_f4.s","w").write(gen.build(ks))
```

```python
import sys

NAME = "adaLN_cond__sliding_block__glu_gated_bilinear__prompt"

KA = dict(x=0, wqkv=8, wo=16, bx=24, wg=32, wu=40, wd=48, c=56, wmod=64, out=72, dbg=80, ws=88)
WS = {}
_off = 0
def _ws(name, size):
    global _off
    _off = (_off + 4095) // 4096 * 4096
    WS[name] = (_off, size)
    _off += size
_ws("MOD", 3840*4)
_ws("H1", 64*40*1024)
_ws("W1", 16*40*4*1024)
_ws("W2", 16*40*6*1024)
_ws("CB2", 16*2048)
_ws("WO", 8*20*5*1024)
_ws("WD", 8*48*5*1024)
_ws("QF1", 32*64*1024)
_ws("QF2", 32*64*512)
_ws("KF1", 32*64*1024)
_ws("KF2", 32*64*512)
_ws("VR", 32*2048*64)
_ws("O", 128*20*1024)
_ws("X1", 64*40*1024)
_ws("STAT", 2048*8*8)
_ws("HH", 128*48*1024)

PROF = False
_ws("PROF", 16*256*256)
class K:
    def __init__(self, name):
        self.name = name
        self.lines = []
        self.nlab = 0
        self.nstamp = 0
        self.vprof = 63
    def stamp(self):
        if not PROF: return
        i = self.nstamp; self.nstamp += 1
        if i == 0:
            self("s_memrealtime s[100:101]")
            self("s_waitcnt lgkmcnt(0)")
            self(f"v_writelane_b32 v{self.vprof}, s100, 62")
        self("s_memtime s[100:101]")
        self("s_waitcnt lgkmcnt(0)")
        self(f"v_writelane_b32 v{self.vprof}, s100, {i}")
    def stamps_out(self, kidx, sws, swave):
        if not PROF: return
        lab = self.lab("nostamp")
        self(f"s_mov_b64 exec, -1")
        self(f"s_waitcnt lgkmcnt(0) vmcnt(0)")
        self.stamp()
        self("s_memrealtime s[100:101]")
        self("s_waitcnt lgkmcnt(0)")
        self(f"v_writelane_b32 v{self.vprof}, s100, 63")
        self(f"s_cmp_lg_u32 s{swave}, 0")
        self(f"s_cbranch_scc1 {lab}")
        self.wsrd(68, sws, "PROF")
        self(f"s_lshl_b32 s66, s2, 8")
        self(f"s_add_u32 s66, s66, {kidx*256*256}")
        self(f"v_mbcnt_lo_u32_b32 v0, -1, 0")
        self(f"v_mbcnt_hi_u32_b32 v0, -1, v0")
        self(f"v_lshlrev_b32 v0, 2, v0")
        self(f"buffer_store_dword v{self.vprof}, v0, s[68:71], s66 offen")
        self(f"{lab}:")
    def __call__(self, s=""):
        for l in s.split("\n"):
            l = l.strip()
            if l:
                self.lines.append(("" if l.endswith(":") else "  ") + l)
    def lab(self, base):
        self.nlab += 1
        return f"L_{self.name}_{base}_{self.nlab}"
    def text(self):
        return "\n".join(self.lines) + "\n"
    def kptr(self, sreg, key):
        self(f"s_load_dwordx2 s[{sreg}:{sreg+1}], s[0:1], {KA[key]}")
    def srd(self, d, base, size, add=0):
        if add:
            self(f"s_add_u32 s{d}, s{base}, {add:#x}")
            self(f"s_addc_u32 s{d+1}, s{base+1}, 0")
        else:
            self(f"s_mov_b32 s{d}, s{base}")
            self(f"s_mov_b32 s{d+1}, s{base+1}")
        self(f"s_and_b32 s{d+1}, s{d+1}, 0xffff")
        self(f"s_mov_b32 s{d+2}, {size:#x}")
        self(f"s_mov_b32 s{d+3}, 0x20000")
    def wsrd(self, d, wsbase, key):
        o, sz = WS[key]
        self.srd(d, wsbase, sz, o)

def header(launches):
    s = "; adaLN + sliding-window attention + GLU block for MI355X (gfx950), generated from a Python script\n"
    for k, g, b, lds in launches:
        s += f"; @launch kernel={k} grid=({g},1,1) block=({b},1,1) lds={lds}\n"
    s += '.amdgcn_target "amdgcn-amd-amdhsa--gfx950"\n.text\n'
    return s

def kern_begin(name):
    return f".globl {name}\n.p2align 8\n.type {name},@function\n{name}:\n"

def kern_desc(name, nvgpr, accoff, nsgpr=102):
    return f""".p2align 6
.amdhsa_kernel {name}
  .amdhsa_next_free_vgpr {nvgpr}
  .amdhsa_next_free_sgpr {nsgpr}
  .amdhsa_accum_offset {accoff}
  .amdhsa_group_segment_fixed_size 0
  .amdhsa_kernarg_size 96
  .amdhsa_user_sgpr_count 2
  .amdhsa_user_sgpr_kernarg_segment_ptr 1
  .amdhsa_system_sgpr_workgroup_id_x 1
  .amdhsa_float_denorm_mode_32 3
.end_amdhsa_kernel
"""

LOG2E = 1.4426950408889634
import struct
def f2u(x): return struct.unpack("<I", struct.pack("<f", x))[0]
def fhex(x): return f"{f2u(x):#010x}"

def k_mod():
    k = K("mod")
    NWG = 120
    k(f"""
    s_cmp_ge_u32 s2, {NWG}
    s_cbranch_scc1 L_mod_end
    """)
    k.vprof = 95
    k.stamp()
    k.kptr(4, "c"); k.kptr(6, "wmod"); k.kptr(8, "ws")
    k("v_lshrrev_b32 v1, 6, v0\ns_nop 0\nv_readfirstlane_b32 s3, v1")
    k("""
    v_and_b32 v1, 3, v0            ; cc
    v_lshrrev_b32 v2, 2, v0        ; rg 0..63
    s_waitcnt lgkmcnt(0)
    """)
    k.srd(12, 4, 1280)
    k.srd(16, 6, 640*7680)
    k.wsrd(20, 8, "MOD")
    k("""
    v_lshlrev_b32 v3, 1, v2
    s_mov_b32 s24, 7680
    v_mul_lo_u32 v4, v2, s24       ; row*7680
    v_lshlrev_b32 v5, 4, v1        ; cc*16
    v_add_u32 v4, v4, v5
    s_lshl_b32 s25, s2, 6
    v_add_u32 v4, s25, v4
    """)
    for it in range(10):
        k(f"buffer_load_ushort v{10+it}, v3, s[12:15], 0 offen offset:{it*128}")
    for it in range(10):
        k(f"s_mov_b32 s26, {it*64*7680}")
        k(f"buffer_load_dwordx4 v[{20+4*it}:{23+4*it}], v4, s[16:19], s26 offen")
    k("s_waitcnt vmcnt(10)")
    k(f"s_mov_b32 s27, {fhex(-LOG2E)}")
    for it in range(10):
        k(f"v_lshlrev_b32 v{10+it}, 16, v{10+it}")
    for it in range(10):
        k(f"v_mul_f32 v{60+it}, s27, v{10+it}")
    for it in range(10):
        k(f"v_exp_f32 v{60+it}, v{60+it}")
    k("s_nop 0")
    for it in range(10):
        k(f"v_add_f32 v{60+it}, 1.0, v{60+it}")
    for it in range(10):
        k(f"v_rcp_f32 v{60+it}, v{60+it}")
    k("s_nop 0")
    for it in range(10):
        k(f"v_mul_f32 v{10+it}, v{10+it}, v{60+it}")
    for it in range(10):
        k(f"v_cvt_pk_bf16_f32 v{10+it}, v{10+it}, v{10+it}")
    for it in range(10):
        k(f"v_lshlrev_b32 v{10+it}, 16, v{10+it}")
    for j in range(8):
        k(f"v_mov_b32 v{70+j}, 0")
    for it in range(10):
        k(f"s_waitcnt vmcnt({9-it})")
        for r in range(4):
            w = 20+4*it+r
            k(f"v_lshlrev_b32 v80, 16, v{w}")
            k(f"v_and_b32 v81, 0xffff0000, v{w}")
            k(f"v_fmac_f32 v{70+2*r}, v{10+it}, v80")
            k(f"v_fmac_f32 v{71+2*r}, v{10+it}, v81")
    k("s_nop 1")
    for sh in (4, 8):
        for j in range(8):
            k(f"v_add_f32_dpp v{82+j}, v{70+j}, v{70+j} row_ror:{sh} row_mask:0xf bank_mask:0xf")
        k("s_nop 1")
        for j in range(8):
            k(f"v_mov_b32 v{70+j}, v{82+j}")
        k("s_nop 1")
    k("""
    v_lshrrev_b32 v5, 4, v0
    v_lshlrev_b32 v5, 7, v5        ; *128 bytes
    v_lshlrev_b32 v6, 5, v1        ; cc*32
    v_add_u32 v5, v5, v6
    v_and_b32 v6, 12, v0
    v_cmp_eq_u32 vcc, 0, v6
    s_and_saveexec_b64 s[28:29], vcc
    ds_write_b128 v5, v[70:73]
    ds_write_b128 v5, v[74:77] offset:16
    s_mov_b64 exec, s[28:29]
    s_waitcnt lgkmcnt(0)
    s_barrier
    v_cmp_gt_u32 vcc, 32, v0
    s_and_saveexec_b64 s[28:29], vcc
    s_cbranch_execz L_mod_end
    v_lshlrev_b32 v5, 2, v0
    """)
    for p in range(16):
        k(f"ds_read_b32 v{20+p}, v5 offset:{p*128}")
    k("s_waitcnt lgkmcnt(0)")
    for p in range(1, 16):
        k(f"v_add_f32 v20, v20, v{20+p}")
    k("""
    v_cvt_pk_bf16_f32 v20, v20, v20
    v_lshlrev_b32 v20, 16, v20
    s_cmp_ge_u32 s2, 20
    s_cselect_b32 s26, 1, 0
    s_cmp_lt_u32 s2, 40
    s_cselect_b32 s27, s26, 0
    s_cmp_ge_u32 s2, 80
    s_cselect_b32 s26, 1, 0
    s_cmp_lt_u32 s2, 100
    s_cselect_b32 s26, s26, 0
    s_or_b32 s26, s26, s27
    s_cmp_eq_u32 s26, 0
    s_cbranch_scc1 L_mod_store
    v_add_f32 v20, 1.0, v20
    v_cvt_pk_bf16_f32 v20, v20, v20
    v_lshlrev_b32 v20, 16, v20
    L_mod_store:
    s_lshl_b32 s25, s2, 7
    v_add_u32 v5, s25, v5
    buffer_store_dword v20, v5, s[20:23], 0 offen
    """)
    k.stamps_out(0, 8, 3)
    k("""
    L_mod_end:
    s_endpgm
    """)
    return k.text(), NWG, 256, 4096, 96, 96


def k_prep():
    k = K("prep")
    NWG = 304
    k(f"""
    s_cmp_ge_u32 s2, {NWG}
    s_cbranch_scc1 L_prep_end
    """)
    k.kptr(4, "ws")
    k("""
    v_lshrrev_b32 v1, 6, v0
    v_and_b32 v2, 63, v0           ; lane
    s_nop 0
    v_readfirstlane_b32 s3, v1     ; wave
    s_cmp_ge_u32 s2, 240
    s_cbranch_scc1 L_prep_h1
    s_cmp_ge_u32 s2, 200
    s_cbranch_scc1 L_prep_wd
    s_cmp_ge_u32 s2, 160
    s_cbranch_scc1 L_prep_wo
    s_cmp_ge_u32 s2, 64
    s_cbranch_scc1 L_prep_w2
    """)
    k.kptr(6, "wqkv")
    k("""
    s_lshr_b32 s30, s2, 2          ; g
    s_and_b32 s31, s2, 3           ; T
    s_lshr_b32 s32, s31, 1
    s_lshl_b32 s33, s30, 1
    s_add_u32 s33, s33, s32        ; head = 2g + (T>>1)
    s_mul_i32 s33, s33, 20         ; head*20
    s_and_b32 s34, s31, 1
    s_lshl_b32 s34, s34, 5         ; 32*(T&1)
    v_and_b32 v3, 31, v2
    v_add_u32 v3, s34, v3          ; sl' 0..63
    v_add_u32 v4, s33, v3          ; Q col
    v_add_u32 v5, 616, v4          ; K col (640-24)
    v_add_u32 v6, 1236, v4         ; V col (1280-44)
    v_cmp_gt_u32 vcc, 44, v3
    s_nop 1
    v_cndmask_b32 v6, v6, v5, vcc  ; sl'<44 ? K : V
    v_cmp_gt_u32 vcc, 24, v3
    s_nop 1
    v_mov_b32 v7, 0x20000000
    v_cndmask_b32 v6, v6, v7, vcc
    v_cmp_gt_u32 vcc, 20, v3
    s_nop 1
    v_cndmask_b32 v6, v6, v4, vcc  ; sl'<20 -> Q
    v_lshlrev_b32 v6, 1, v6
    v_lshrrev_b32 v7, 5, v2        ; h
    s_mov_b32 s35, 8*3840
    v_mul_lo_u32 v7, v7, s35
    v_add_u32 v6, v6, v7           ; voffset
    s_waitcnt lgkmcnt(0)
    """)
    k.srd(8, 6, 640*3840)
    k.wsrd(12, 4, "W1")
    k("""
    v_lshlrev_b32 v8, 4, v2        ; lane*16
    s_mul_i32 s36, s30, 160*1024
    s_lshl_b32 s37, s31, 10
    s_add_u32 s36, s36, s37
    """)
    pure_copy(k, nsteps_per_wave=10, rowstride=3840, rows_per_step=16, dst_step=4096, rowmap=None)
    k("s_branch L_prep_end")

    k("L_prep_wo:")
    k.kptr(6, "wo")
    k("""
    s_sub_u32 s30, s2, 160
    s_mul_i32 s31, s30, 13108
    s_lshr_b32 s31, s31, 16        ; j
    s_mul_i32 s32, s31, 5
    s_sub_u32 s32, s30, s32        ; T
    v_and_b32 v3, 15, v2           ; slot
    s_mul_i32 s33, s31, 80
    s_lshl_b32 s34, s32, 4
    s_add_u32 s33, s33, s34
    v_add_u32 v6, s33, v3
    v_lshlrev_b32 v6, 1, v6        ; col*2
    v_lshrrev_b32 v7, 4, v2        ; q
    s_waitcnt lgkmcnt(0)
    """)
    k.srd(8, 6, 640*1280)
    k.wsrd(12, 4, "WO")
    k("""
    v_lshlrev_b32 v8, 4, v2
    s_mul_i32 s36, s31, 100*1024
    s_lshl_b32 s37, s32, 10
    s_add_u32 s36, s36, s37
    """)
    for it in range(5):
        k(f"""
        s_lshl_b32 s40, s3, 2
        s_add_u32 s40, s40, {it*16}
        v_add_u32 v9, s40, v7             ; p
        s_mov_b32 s41, 13108
        v_mul_lo_u32 v10, v9, s41
        v_lshrrev_b32 v10, 16, v10        ; g
        v_mul_u32_u24 v11, 5, v10
        v_sub_u32 v11, v9, v11            ; pp
        v_mul_u32_u24 v10, 40, v10        ; 40g
        v_and_b32 v12, 1, v11
        v_lshlrev_b32 v12, 2, v12         ; 4*(pp&1)
        v_lshrrev_b32 v13, 1, v11
        v_mul_u32_u24 v13, 20, v13        ; 20*(pp>>1)
        v_add_u32 v12, v12, v13
        v_add_u32 v13, 8, v12             ; base1
        v_cmp_eq_u32 vcc, 4, v11
        s_nop 1
        v_mov_b32 v14, 16
        v_cndmask_b32 v12, v12, v14, vcc
        v_mov_b32 v14, 36
        v_cndmask_b32 v13, v13, v14, vcc
        v_add_u32 v12, v12, v10
        v_add_u32 v13, v13, v10
        v_mul_u32_u24 v12, 1280, v12
        v_mul_u32_u24 v13, 1280, v13
        v_add_u32 v12, v12, v6
        v_add_u32 v13, v13, v6
        """)
        for j in range(8):
            base = "v12" if j < 4 else "v13"
            k(f"buffer_load_ushort v{100 + 8*it + j}, {base}, s[8:11], 0 offen offset:{(j%4)*1280}")
    k("s_waitcnt vmcnt(0)")
    for it in range(5):
        d = 20 + 4*it
        for r in range(4):
            k(f"v_lshl_or_b32 v{d+r}, v{100+8*it+2*r+1}, 16, v{100+8*it+2*r}")
        k(f"s_add_u32 s40, s3, {4*it}")
        k(f"s_mul_i32 s40, s40, 5120")
        k(f"s_add_u32 s40, s40, s36")
        k(f"buffer_store_dwordx4 v[{d}:{d+3}], v8, s[12:15], s40 offen")
    k("s_branch L_prep_end")

    k("L_prep_wd:")
    k.kptr(6, "wd")
    k("""
    s_sub_u32 s30, s2, 200
    s_mul_i32 s31, s30, 13108
    s_lshr_b32 s31, s31, 16        ; j
    s_mul_i32 s32, s31, 5
    s_sub_u32 s32, s30, s32        ; T
    v_and_b32 v3, 15, v2           ; slot
    s_mul_i32 s33, s31, 80
    s_lshl_b32 s34, s32, 4
    s_add_u32 s33, s33, s34
    v_add_u32 v6, s33, v3
    v_lshlrev_b32 v6, 1, v6        ; col*2
    v_lshrrev_b32 v7, 4, v2        ; q
    ; row(j) = 32 s + 16*(q>>1) + 4*(q&1) + j (j<4) ; +8 + (j-4) (j>=4)
    v_lshrrev_b32 v9, 1, v7
    v_lshlrev_b32 v9, 4, v9
    v_and_b32 v10, 1, v7
    v_lshlrev_b32 v10, 2, v10
    v_add_u32 v9, v9, v10
    v_mul_u32_u24 v9, 1280, v9
    v_add_u32 v12, v6, v9          ; rows +0..3
    v_add_u32 v13, 8*1280, v12     ; rows +8..11
    s_waitcnt lgkmcnt(0)
    """)
    k.srd(8, 6, 1536*1280)
    k.wsrd(12, 4, "WD")
    k("""
    v_lshlrev_b32 v8, 4, v2
    s_mul_i32 s36, s31, 240*1024
    s_lshl_b32 s37, s32, 10
    s_add_u32 s36, s36, s37
    """)
    for half in range(2):
        for it in range(6):
            st = half*6 + it
            k(f"s_add_u32 s40, s3, {4*st}")
            k(f"s_mul_i32 s41, s40, {32*1280}")
            for j in range(8):
                base = "v12" if j < 4 else "v13"
                k(f"buffer_load_ushort v{100 + 8*it + j}, {base}, s[8:11], s41 offen offset:{(j%4)*1280}")
        k("s_waitcnt vmcnt(0)")
        for it in range(6):
            st = half*6 + it
            d = 20 + 4*it
            for r in range(4):
                k(f"v_lshl_or_b32 v{d+r}, v{100+8*it+2*r+1}, 16, v{100+8*it+2*r}")
            k(f"s_add_u32 s40, s3, {4*st}")
            k(f"s_mul_i32 s40, s40, 5120")
            k(f"s_add_u32 s40, s40, s36")
            k(f"buffer_store_dwordx4 v[{d}:{d+3}], v8, s[12:15], s40 offen")
        k("s_nop 1")
    k("s_branch L_prep_end")

    k("L_prep_w2:")
    k.kptr(6, "wg"); k.kptr(16, "wu")
    k("""
    s_sub_u32 s30, s2, 64
    s_mul_i32 s31, s30, 10923      ; /6 (id<96)
    s_lshr_b32 s31, s31, 16        ; j
    s_mul_i32 s32, s31, 6
    s_sub_u32 s32, s30, s32        ; T
    v_and_b32 v3, 31, v2           ; slot
    v_lshrrev_b32 v4, 4, v3
    v_lshlrev_b32 v4, 3, v4
    v_and_b32 v5, 7, v3
    v_add_u32 v4, v4, v5
    s_mul_i32 s33, s31, 96
    s_lshl_b32 s34, s32, 4
    s_add_u32 s33, s33, s34
    v_add_u32 v4, s33, v4
    v_lshlrev_b32 v6, 1, v4        ; col*2
    v_lshrrev_b32 v7, 5, v2        ; h
    s_mov_b32 s35, 8*3072
    v_mul_lo_u32 v9, v7, s35
    v_add_u32 v6, v6, v9           ; voffset
    v_and_b32 v9, 8, v2
    v_cmp_eq_u32 s[44:45], 0, v9
    v_cmp_ne_u32 s[46:47], 0, v9
    v_lshlrev_b32 v10, 5, v7
    s_waitcnt lgkmcnt(0)
    """)
    k.srd(8, 6, 640*3072)
    k.srd(20, 16, 640*3072)
    k.wsrd(12, 4, "W2")
    k.wsrd(24, 4, "MOD")
    k("""
    v_lshlrev_b32 v8, 4, v2
    s_mul_i32 s36, s31, 240*1024
    s_lshl_b32 s37, s32, 10
    s_add_u32 s36, s36, s37        ; dest: j*240K + T*1K (+ s*6K)
    v_mov_b32 v14, 0               ; cs
    v_mov_b32 v15, 0               ; bs
    s_mov_b32 s38, 0               ; it
    L_prep_w2_loop:
    s_lshl_b32 s39, s38, 2
    s_add_u32 s39, s39, s3
    s_mul_i32 s40, s39, 16*3072
    s_lshl_b32 s42, s39, 6         ; s*64 bytes
    s_add_u32 s43, s42, 4*640*4    ; c2
    buffer_load_dwordx4 v[40:43], v10, s[24:27], s43 offen
    buffer_load_dwordx4 v[44:47], v10, s[24:27], s43 offen offset:16
    s_add_u32 s43, s42, 3*640*4    ; sb
    buffer_load_dwordx4 v[48:51], v10, s[24:27], s43 offen
    buffer_load_dwordx4 v[52:55], v10, s[24:27], s43 offen offset:16
    """)
    k("s_mov_b64 exec, s[44:45]")
    for j in range(8):
        k(f"s_add_u32 s41, s40, {j*3072}")
        k(f"buffer_load_ushort v{20+j}, v6, s[8:11], s41 offen")
    k("s_mov_b64 exec, s[46:47]")
    for j in range(8):
        k(f"s_add_u32 s41, s40, {j*3072}")
        k(f"buffer_load_ushort v{20+j}, v6, s[20:23], s41 offen")
    k("s_mov_b64 exec, -1")
    k("s_waitcnt vmcnt(0)")
    for j in range(8):
        k(f"v_lshlrev_b32 v{20+j}, 16, v{20+j}")
    for j in range(8):
        k(f"v_fmac_f32 v15, v{48+j}, v{20+j}")
        k(f"v_mul_f32 v{20+j}, v{40+j}, v{20+j}")
    for r in range(4):
        k(f"v_cvt_pk_bf16_f32 v{30+r}, v{20+2*r}, v{21+2*r}")
    for r in range(4):
        k(f"v_lshlrev_b32 v34, 16, v{30+r}")
        k(f"v_and_b32 v35, 0xffff0000, v{30+r}")
        k(f"v_add_f32 v14, v14, v34")
        k(f"v_add_f32 v14, v14, v35")
    k(f"""
    s_mul_i32 s40, s39, 6144
    s_add_u32 s40, s40, s36
    buffer_store_dwordx4 v[30:33], v8, s[12:15], s40 offen
    s_add_u32 s38, s38, 1
    s_cmp_lt_u32 s38, 10
    s_waitcnt vmcnt(0)
    s_cbranch_scc1 L_prep_w2_loop
    v_mov_b32 v16, v14
    v_mov_b32 v17, v15
    s_nop 1
    v_permlane32_swap_b32 v14, v16
    v_permlane32_swap_b32 v15, v17
    s_nop 1
    v_add_f32 v14, v14, v16
    v_add_f32 v15, v15, v17
    v_and_b32 v3, 31, v2
    v_lshlrev_b32 v4, 3, v3        ; slot*8
    s_lshl_b32 s39, s3, 8          ; wave*256
    v_add_u32 v4, s39, v4
    ds_write_b64 v4, v[14:15]
    s_waitcnt lgkmcnt(0)
    s_barrier
    s_cmp_lg_u32 s3, 0
    s_cbranch_scc1 L_prep_end
    v_lshlrev_b32 v4, 3, v3
    ds_read_b64 v[14:15], v4
    ds_read_b64 v[16:17], v4 offset:256
    ds_read_b64 v[18:19], v4 offset:512
    ds_read_b64 v[20:21], v4 offset:768
    s_waitcnt lgkmcnt(0)
    v_add_f32 v14, v14, v16
    v_add_f32 v15, v15, v17
    v_add_f32 v18, v18, v20
    v_add_f32 v19, v19, v21
    v_add_f32 v14, v14, v18
    v_add_f32 v15, v15, v19
    """)
    k.wsrd(52, 4, "CB2")
    k("""
    v_lshrrev_b32 v4, 2, v3
    v_lshlrev_b32 v4, 5, v4
    v_and_b32 v5, 3, v3
    v_lshlrev_b32 v5, 2, v5
    v_add_u32 v4, v4, v5
    s_lshl_b32 s39, s31, 11
    s_lshl_b32 s40, s32, 8
    s_add_u32 s39, s39, s40
    v_cmp_gt_u32 vcc, 32, v2
    s_and_saveexec_b64 s[48:49], vcc
    buffer_store_dword v14, v4, s[52:55], s39 offen
    buffer_store_dword v15, v4, s[52:55], s39 offen offset:16
    s_branch L_prep_end
    """)

    k("L_prep_h1:")
    k.kptr(6, "x")
    k("""
    s_sub_u32 s30, s2, 240         ; R32
    v_and_b32 v3, 31, v2
    v_lshrrev_b32 v7, 5, v2        ; h
    s_lshl_b32 s31, s30, 5
    v_add_u32 v4, s31, v3          ; token
    v_mul_u32_u24 v4, 1280, v4
    v_lshlrev_b32 v5, 4, v7        ; h*16 bytes
    v_add_u32 v4, v4, v5
    s_mul_i32 s32, s3, 320
    v_add_u32 v4, s32, v4
    v_lshlrev_b32 v10, 5, v7
    s_waitcnt lgkmcnt(0)
    """)
    k.srd(8, 6, 2048*1280)
    k.wsrd(12, 4, "H1")
    k.wsrd(24, 4, "MOD")
    for it in range(10):
        k(f"buffer_load_dwordx4 v[{20+4*it}:{23+4*it}], v4, s[8:11], 0 offen offset:{it*32}")
    k("s_waitcnt vmcnt(0)")
    for r in range(40):
        k(f"v_lshlrev_b32 v{64+2*r}, 16, v{20+r}")
        k(f"v_and_b32 v{65+2*r}, 0xffff0000, v{20+r}")
    k("v_mov_b32 v14, 0\nv_mov_b32 v15, 0")
    for e in range(0, 80, 2):
        k(f"v_add_f32 v14, v14, v{64+e}")
        k(f"v_add_f32 v15, v15, v{65+e}")
    k("""
    v_add_f32 v14, v14, v15
    v_mov_b32 v16, v14
    s_nop 1
    v_permlane32_swap_b32 v14, v16
    s_nop 1
    v_add_f32 v14, v14, v16
    v_lshlrev_b32 v5, 2, v3        ; token*4
    s_lshl_b32 s33, s3, 7          ; wave*128
    v_add_u32 v6, s33, v5
    ds_write_b32 v6, v14
    s_waitcnt lgkmcnt(0)
    s_barrier
    ds_read_b32 v14, v5
    ds_read_b32 v15, v5 offset:128
    ds_read_b32 v16, v5 offset:256
    ds_read_b32 v17, v5 offset:384
    s_waitcnt lgkmcnt(0)
    v_add_f32 v14, v14, v15
    v_add_f32 v16, v16, v17
    v_add_f32 v14, v14, v16
    """)
    k(f"v_mul_f32 v14, {fhex(1.0/640)}, v14     ; mean")
    for e in range(80):
        k(f"v_sub_f32 v{64+e}, v{64+e}, v14")
    k("v_mov_b32 v15, 0\nv_mov_b32 v16, 0")
    for e in range(0, 80, 2):
        k(f"v_fmac_f32 v15, v{64+e}, v{64+e}")
        k(f"v_fmac_f32 v16, v{65+e}, v{65+e}")
    k("""
    v_add_f32 v15, v15, v16
    v_mov_b32 v16, v15
    s_nop 1
    v_permlane32_swap_b32 v15, v16
    s_nop 1
    v_add_f32 v15, v15, v16
    ds_write_b32 v6, v15 offset:512
    s_waitcnt lgkmcnt(0)
    s_barrier
    ds_read_b32 v15, v5 offset:512
    ds_read_b32 v16, v5 offset:640
    ds_read_b32 v17, v5 offset:768
    ds_read_b32 v18, v5 offset:896
    s_waitcnt lgkmcnt(0)
    v_add_f32 v15, v15, v16
    v_add_f32 v17, v17, v18
    v_add_f32 v15, v15, v17
    """)
    k(f"v_mul_f32 v15, {fhex(1.0/640)}, v15")
    k(f"v_add_f32 v15, {fhex(1e-5)}, v15")
    k("v_rsq_f32 v15, v15\ns_nop 0")
    k("v_lshlrev_b32 v8, 4, v2")
    for it in range(10):
        k(f"""
        s_mul_i32 s34, s3, 640
        s_add_u32 s34, s34, {it*64}       ; s*64 bytes
        s_add_u32 s35, s34, 2560
        buffer_load_dwordx4 v[20:23], v10, s[24:27], s34 offen
        buffer_load_dwordx4 v[24:27], v10, s[24:27], s34 offen offset:16
        buffer_load_dwordx4 v[28:31], v10, s[24:27], s35 offen
        buffer_load_dwordx4 v[32:35], v10, s[24:27], s35 offen offset:16
        s_waitcnt vmcnt(0)
        """)
        for e in range(8):
            r = 64 + 8*it + e
            k(f"v_mul_f32 v{r}, v{r}, v15")
        for e in range(8):
            r = 64 + 8*it + e
            if e % 2 == 0:
                k(f"v_cvt_pk_bf16_f32 v36, v{r}, v{r+1}")
                k(f"v_lshlrev_b32 v{r}, 16, v36")
                k(f"v_and_b32 v{r+1}, 0xffff0000, v36")
        for e in range(8):
            r = 64 + 8*it + e
            k(f"v_fma_f32 v{r}, v{r}, v{28+e}, v{20+e}")
        for e in range(0, 8, 2):
            r = 64 + 8*it + e
            k(f"v_cvt_pk_bf16_f32 v{40+e//2}, v{r}, v{r+1}")
        k(f"""
        s_mul_i32 s34, s30, 40
        s_mul_i32 s35, s3, 10
        s_add_u32 s34, s34, s35
        s_add_u32 s34, s34, {it}
        s_lshl_b32 s34, s34, 10
        buffer_store_dwordx4 v[40:43], v8, s[12:15], s34 offen
        s_nop 1
        """)
    k("""
    L_prep_end:
    s_endpgm
    """)
    return k.text(), NWG, 256, 4096, 160, 160

def pure_copy(k, nsteps_per_wave, rowstride, rows_per_step, dst_step, rowmap):
    for half in range(2):
        n = nsteps_per_wave // 2
        for it in range(n):
            st = half*n + it
            k(f"s_add_u32 s40, s3, {4*st}")
            k(f"s_mul_i32 s41, s40, {rows_per_step*rowstride}")
            for j in range(8):
                k(f"s_add_u32 s42, s41, {j*rowstride}")
                k(f"buffer_load_ushort v{100 + 8*it + j}, v6, s[8:11], s42 offen")
        k("s_waitcnt vmcnt(0)")
        for it in range(n):
            st = half*n + it
            d = 20 + 4*it
            for r in range(4):
                k(f"v_lshl_or_b32 v{d+r}, v{100+8*it+2*r+1}, 16, v{100+8*it+2*r}")
            k(f"s_add_u32 s40, s3, {4*st}")
            k(f"s_mul_i32 s40, s40, {dst_step}")
            k(f"s_add_u32 s40, s40, s36")
            k(f"buffer_store_dwordx4 v[{d}:{d+3}], v8, s[12:15], s40 offen")
        k("s_nop 1")

def gemm_a_main(k, NT, D, ACC, WF, sX, sXoff, sW, sWoff, sWave, extra_older=0):
    NS = 10
    KS = 4
    SB = KS*NT*1024
    nW = KS*NT//4
    per = KS + nW
    assert D*SB <= 160*1024
    def lds_addr(slot, idx):
        off = slot*SB + idx*1024
        base = off // 65536
        return f"v{3+base}", off - base*65536
    def issue(i):
        k(f"s_add_u32 s60, s{sXoff}, {i*KS*1024}")
        for ss in range(KS):
            a = (i*KS+ss)*4
            k(f"buffer_load_dwordx4 a[{a}:{a+3}], v3, s[{sX}:{sX+3}], s60 offen offset:{ss*1024}")
        slot = i % D
        k(f"s_add_u32 s61, s{sWoff}, {i*SB}")
        k(f"s_add_u32 s61, s61, s62")
        k(f"s_add_u32 m0, s62, {slot*SB}")
        done = 0
        while done < nW:
            n = min(4, nW-done)
            if done:
                k(f"s_add_u32 s61, s61, 4096")
                k(f"s_add_u32 m0, m0, 4096")
            k("s_nop 0")
            for q in range(n):
                k(f"buffer_load_dwordx4 v3, s[{sW}:{sW+3}], s61 offen offset:{q*1024} lds")
            done += n
    k(f"s_mul_i32 s62, s{sWave}, {nW*1024}")
    for i in range(min(D, NS)):
        issue(i)
    issued = min(D, NS)
    def reads(i, ss, buf):
        for T in range(NT):
            v, off = lds_addr(i % D, ss*NT+T)
            r = WF + buf*NT*4 + T*4
            k(f"ds_read_b128 v[{r}:{r+3}], {v} offset:{off}")
    k.stamp()
    k(f"s_waitcnt vmcnt({(issued-1)*per})")
    k("s_barrier")
    k.stamp()
    reads(0, 0, 0)
    buf = 0
    for i in range(NS):
        if i in (2, 5, 8): k.stamp()
        for ss in range(KS):
            last = (ss == KS-1)
            if not last:
                reads(i, ss+1, buf ^ 1)
                k(f"s_waitcnt lgkmcnt({NT})")
            else:
                if i+1 < NS:
                    n_after = (issued - (i+2)) * per
                    k(f"s_waitcnt vmcnt({n_after}) lgkmcnt(0)")
                    k("s_barrier")
                    if issued < NS:
                        issue(issued); issued += 1
                    reads(i+1, 0, buf ^ 1)
                else:
                    k("s_waitcnt lgkmcnt(0)")
            a = (i*KS+ss)*4
            for T in range(NT):
                r = WF + buf*NT*4 + T*4
                c = f"v[{ACC+16*T}:{ACC+16*T+15}]"
                src = "0" if (i == 0 and ss == 0) else c
                k(f"v_mfma_f32_32x32x16_bf16 {c}, v[{r}:{r+3}], a[{a}:{a+3}], {src}")
            buf ^= 1
    k("s_nop 15")

def wgmap_4x8(k, sM, sN):
    k(f"""
    s_and_b32 s50, s2, 7
    s_lshr_b32 s51, s2, 3
    s_lshr_b32 s{sM}, s50, 1
    s_lshl_b32 s{sM}, s{sM}, 2
    s_and_b32 s52, s51, 3
    s_add_u32 s{sM}, s{sM}, s52
    s_and_b32 s{sN}, s50, 1
    s_lshl_b32 s{sN}, s{sN}, 3
    s_lshr_b32 s52, s51, 2
    s_add_u32 s{sN}, s{sN}, s52
    """)

def k_qkv():
    k = K("qkv")
    NWG = 256
    ACC, WF = 64, 16
    k(f"""
    s_cmp_ge_u32 s2, {NWG}
    s_cbranch_scc1 L_qkv_end
    """)
    k.vprof = 60
    k.stamp()
    k.kptr(4, "ws")
    k("""
    v_lshrrev_b32 v1, 6, v0
    v_and_b32 v2, 63, v0
    v_lshlrev_b32 v3, 4, v2
    v_readfirstlane_b32 s3, v1     ; wave
    v_add_u32 v4, 0x10000, v3
    v_add_u32 v5, 0x20000, v3
    """)
    wgmap_4x8(k, 30, 31)
    k("s_waitcnt lgkmcnt(0)")
    k.wsrd(8, 4, "H1"); k.wsrd(12, 4, "W1")
    k("""
    s_lshl_b32 s32, s30, 2
    s_add_u32 s32, s32, s3         ; R32
    s_mul_i32 s33, s32, 40*1024    ; X offset
    s_mul_i32 s34, s31, 160*1024   ; W offset
    """)
    gemm_a_main(k, 4, 7, ACC, WF, 8, 33, 12, 34, 3)
    k.stamp()
    k.wsrd(16, 4, "QF1"); k.wsrd(20, 4, "QF2"); k.wsrd(24, 4, "KF1"); k.wsrd(28+8, 4, "KF2"); k.wsrd(40, 4, "VR")
    k("""
    v_lshlrev_b32 v6, 3, v2        ; lane*8
    v_lshrrev_b32 v7, 5, v2        ; h
    v_and_b32 v8, 31, v2
    s_lshl_b32 s44, s32, 5
    v_add_u32 v8, s44, v8          ; token
    v_lshlrev_b32 v8, 6, v8        ; token*64
    v_cmp_eq_u32 s[46:47], 0, v7   ; h==0 lanes
    """)
    for hd in range(2):
        t0 = ACC + 32*hd; t1 = t0 + 16
        P = 16
        for r in range(4): k(f"v_cvt_pk_bf16_f32 v{P+r}, v{t0+2*r}, v{t0+2*r+1}")
        for r in range(2): k(f"v_cvt_pk_bf16_f32 v{P+4+r}, v{t0+8+2*r}, v{t0+9+2*r}")
        for r in range(2): k(f"v_cvt_pk_bf16_f32 v{P+8+r}, v{t0+12+2*r}, v{t0+13+2*r}")
        for r in range(2): k(f"v_cvt_pk_bf16_f32 v{P+10+r}, v{t1+2*r}, v{t1+2*r+1}")
        for r in range(6): k(f"v_cvt_pk_bf16_f32 v{P+12+r}, v{t1+4+2*r}, v{t1+5+2*r}")
        k(f"""
        s_lshl_b32 s45, s31, 1
        s_add_u32 s45, s45, {hd}        ; head
        s_lshl_b32 s48, s45, 6
        s_add_u32 s48, s48, s32         ; head*64 + R32
        s_lshl_b32 s49, s48, 10
        s_lshl_b32 s53, s48, 9
        buffer_store_dwordx4 v[{P}:{P+3}], v3, s[16:19], s49 offen
        buffer_store_dwordx2 v[{P+4}:{P+5}], v6, s[20:23], s53 offen
        buffer_store_dwordx4 v[{P+8}:{P+11}], v3, s[24:27], s49 offen
        buffer_store_dwordx2 v[{P+12}:{P+13}], v6, s[36:39], s53 offen
        s_lshl_b32 s54, s45, 17         ; head*2048*64
        v_mov_b32 v{P+20}, 0x3f80
        v_mov_b32 v{P+21}, 0
        v_cndmask_b32 v{P+18}, v{P+12}, v{P+20}, s[46:47]
        v_cndmask_b32 v{P+19}, v{P+13}, v{P+21}, s[46:47]
        v_mov_b32 v9, 40
        v_cndmask_b32 v9, 0, v9, s[46:47]
        v_add_u32 v9, v8, v9
        buffer_store_dwordx2 v[{P+18}:{P+19}], v9, s[40:43], s54 offen
        v_lshlrev_b32 v9, 3, v7
        v_add_u32 v9, v8, v9
        buffer_store_dwordx2 v[{P+14}:{P+15}], v9, s[40:43], s54 offen offset:8
        buffer_store_dwordx2 v[{P+16}:{P+17}], v9, s[40:43], s54 offen offset:24
        v_cndmask_b32 v{P+22}, 0, v{P+20}, s[46:47]
        v_mov_b32 v{P+23}, 0
        buffer_store_dwordx2 v[{P+22}:{P+23}], v9, s[40:43], s54 offen offset:48
        s_nop 1
        """)
    k.stamps_out(2, 4, 3)
    k("""
    L_qkv_end:
    s_endpgm
    """)
    return k.text(), NWG, 256, 7*16384, 128+160, 128

def attn_core(k, S, Q1, Q2, O, TMP, vK1, vK2, vV, sFirst, MASK):
    NEG = fhex(-1e30)
    for t in range(9):
        skip = k.lab("skipqk"); done = k.lab("doneqk")
        if t < 8:
            k(f"s_cmp_gt_u32 s{sFirst}, {t}")
            k(f"s_cbranch_scc1 {skip}")
        b = TMP + (t % 2)*6
        k(f"ds_read_b128 v[{b}:{b+3}], {vK1} offset:{t*1024}")
        k(f"ds_read_b64 v[{b+4}:{b+5}], {vK2} offset:{t*512}")
        k("s_waitcnt lgkmcnt(0)")
        s = S + 16*t
        k(f"v_mfma_f32_32x32x16_bf16 v[{s}:{s+15}], v[{b}:{b+3}], v[{Q1}:{Q1+3}], 0")
        k(f"v_mfma_f32_32x32x8_bf16 v[{s}:{s+15}], v[{b+4}:{b+5}], v[{Q2}:{Q2+1}], v[{s}:{s+15}]")
        if t < 8:
            k(f"s_branch {done}")
            k(f"{skip}:")
            for r in range(16):
                k(f"v_mov_b32 v{s+r}, {NEG}")
            k(f"{done}:")
    k("s_nop 15")
    k.stamp()
    k(f"v_mov_b32 v{TMP}, {NEG}")
    for r in range(16):
        m = f"s[{MASK+2*r}:{MASK+2*r+1}]"
        k(f"v_cndmask_b32 v{S+128+r}, v{TMP}, v{S+128+r}, {m}")
        k(f"v_cndmask_b32 v{S+r}, v{S+r}, v{TMP}, {m}")
    mx = TMP + 1
    k(f"v_max3_f32 v{mx}, v{S}, v{S+1}, v{S+2}")
    k(f"v_max3_f32 v{mx+1}, v{S+3}, v{S+4}, v{S+5}")
    e = 6
    while e + 3 < 144:
        k(f"v_max3_f32 v{mx}, v{mx}, v{S+e}, v{S+e+1}")
        k(f"v_max3_f32 v{mx+1}, v{mx+1}, v{S+e+2}, v{S+e+3}")
        e += 4
    k(f"v_max3_f32 v{mx}, v{mx}, v{S+142}, v{S+143}")
    k(f"v_max_f32 v{mx}, v{mx}, v{mx+1}")
    k(f"v_mov_b32 v{mx+1}, v{mx}")
    k("s_nop 1")
    k(f"v_permlane32_swap_b32 v{mx}, v{mx+1}")
    k("s_nop 1")
    k(f"v_max_f32 v{mx}, v{mx}, v{mx+1}")
    C = LOG2E * 20 ** -0.5
    k(f"s_mov_b32 s58, {fhex(C)}")
    k(f"v_mul_f32 v{mx}, s58, v{mx}")
    k.stamp()
    first = True
    for t in range(9):
        skip = k.lab("skippv")
        if t < 8:
            k(f"s_cmp_gt_u32 s{sFirst}, {t}")
            k(f"s_cbranch_scc1 {skip}")
        s = S + 16*t
        vb = TMP + 4 + (t % 2)*8
        for st in range(2):
            k(f"ds_read_b64_tr_b16 v[{vb+4*st}:{vb+4*st+1}], {vV} offset:{t*2048 + st*1024}")
            k(f"ds_read_b64_tr_b16 v[{vb+4*st+2}:{vb+4*st+3}], {vV} offset:{t*2048 + st*1024 + 512}")
        for r in range(16):
            k(f"v_fma_f32 v{s+r}, v{s+r}, s58, -v{mx}")
        for r in range(16):
            k(f"v_exp_f32 v{s+r}, v{s+r}")
        k("s_nop 0")
        for r in range(8):
            k(f"v_cvt_pk_bf16_f32 v{s+r}, v{s+2*r}, v{s+2*r+1}")
        k("s_waitcnt lgkmcnt(0)")
        k("s_nop 0")
        k(f"v_mfma_f32_32x32x16_bf16 v[{O}:{O+15}], v[{vb}:{vb+3}], v[{s}:{s+3}], v[{O}:{O+15}]")
        k(f"v_mfma_f32_32x32x16_bf16 v[{O}:{O+15}], v[{vb+4}:{vb+7}], v[{s+4}:{s+7}], v[{O}:{O+15}]")
        if t < 8:
            k(f"{skip}:")
    k("s_nop 15")

def attn_masks(k, MASK, vlane, vtmp):
    k(f"""
    v_and_b32 v{vtmp}, 31, v{vlane}
    v_lshrrev_b32 v{vtmp+1}, 5, v{vlane}
    v_lshlrev_b32 v{vtmp+1}, 2, v{vtmp+1}
    v_sub_u32 v{vtmp}, v{vtmp}, v{vtmp+1}
    """)
    for r in range(16):
        c = 8*(r >> 2) + (r & 3)
        k(f"v_cmp_le_i32 s[{MASK+2*r}:{MASK+2*r+1}], {c}, v{vtmp}")

def k_attn():
    k = K("attn")
    NWG = 256
    HB = 42*1024
    k(f"""
    s_cmp_ge_u32 s2, {NWG}
    s_cbranch_scc1 L_attn_end
    """)
    k.vprof = 60
    k.stamp()
    k.kptr(4, "ws")
    k("""
    v_lshrrev_b32 v1, 6, v0
    v_and_b32 v2, 63, v0
    v_lshlrev_b32 v3, 4, v2        ; lane*16
    v_readfirstlane_b32 s3, v1     ; wave 0..7
    """)
    wgmap_4x8(k, 30, 31)
    k("""
    s_and_b32 s32, s3, 3           ; w
    s_lshr_b32 s33, s3, 2          ; hd
    s_lshl_b32 s34, s31, 1
    s_add_u32 s34, s34, s33        ; head
    s_waitcnt lgkmcnt(0)
    """)
    k.wsrd(8, 4, "QF1"); k.wsrd(12, 4, "QF2"); k.wsrd(16, 4, "KF1"); k.wsrd(20, 4, "KF2"); k.wsrd(24, 4, "VR"); k.wsrd(40, 4, "O")
    Q1, Q2 = 8, 12
    k(f"""
    s_lshl_b32 s35, s30, 2
    s_add_u32 s36, s35, s32        ; qt = 4b + w
    s_lshl_b32 s37, s34, 6         ; head*64
    s_add_u32 s38, s37, s36
    s_lshl_b32 s39, s38, 10
    s_lshl_b32 s38, s38, 9
    v_lshlrev_b32 v6, 3, v2        ; lane*8
    buffer_load_dwordx4 v[{Q1}:{Q1+3}], v3, s[8:11], s39 offen
    buffer_load_dwordx2 v[{Q2}:{Q2+1}], v6, s[12:15], s38 offen
    s_mul_i32 s44, s33, {HB}
    s_sub_i32 s45, s35, 8
    """)
    for i in range(3):
        k(f"""
        s_mul_i32 s46, s32, 3
        s_add_u32 s46, s46, {i}
        s_add_i32 s47, s45, s46
        s_max_i32 s47, s47, 0
        s_add_u32 s47, s47, s37
        s_lshl_b32 s47, s47, 10
        s_lshl_b32 s46, s46, 10
        s_add_u32 m0, s44, s46
        s_nop 0
        buffer_load_dwordx4 v3, s[16:19], s47 offen lds
        """)
    lab = k.lab("nok2")
    k(f"s_cmp_ge_u32 s32, 3\ns_cbranch_scc1 {lab}")
    for i in range(2):
        k(f"""
        s_lshl_b32 s46, s32, 1
        s_add_u32 s46, s46, {i}
        s_lshl_b32 s48, s46, 1
        s_add_i32 s47, s45, s48
        s_max_i32 s47, s47, 0
        s_add_u32 s47, s47, s37
        s_lshl_b32 s47, s47, 9
        s_lshl_b32 s46, s46, 10
        s_add_u32 s46, s46, 12288
        s_add_u32 m0, s44, s46
        s_nop 0
        buffer_load_dwordx4 v3, s[20:23], s47 offen lds
        """)
    k(f"{lab}:")
    for i in range(6):
        k(f"""
        s_mul_i32 s46, s32, 6
        s_add_u32 s46, s46, {i}
        s_lshl_b32 s48, s45, 1
        s_add_i32 s47, s48, s46
        s_max_i32 s47, s47, 0
        s_lshl_b32 s47, s47, 10
        s_lshl_b32 s48, s34, 17
        s_add_u32 s47, s47, s48
        s_lshl_b32 s46, s46, 10
        s_add_u32 s46, s46, 18432
        s_add_u32 m0, s44, s46
        s_nop 0
        buffer_load_dwordx4 v3, s[24:27], s47 offen lds
        """)
    S, O, TMP = 64, 16, 32
    MASK = 64
    attn_masks(k, MASK, 2, 4)
    k(f"""
    s_lshl_b32 s46, s32, 10
    s_add_u32 s46, s46, s44
    v_add_u32 v14, s46, v3             ; K1 addr
    s_lshl_b32 s46, s32, 9
    s_add_u32 s46, s46, s44
    s_add_u32 s46, s46, 12288
    v_add_u32 v15, s46, v6             ; K2 addr
    ; V addr: ((l>>5)*4 + ((l&15)>>2))*64 + ((l>>4)&1)*32 + (l&3)*8
    v_lshrrev_b32 v4, 5, v2
    v_lshlrev_b32 v4, 2, v4
    v_and_b32 v5, 15, v2
    v_lshrrev_b32 v5, 2, v5
    v_add_u32 v4, v4, v5
    v_lshlrev_b32 v4, 6, v4
    v_lshrrev_b32 v5, 4, v2
    v_and_b32 v5, 1, v5
    v_lshlrev_b32 v5, 5, v5
    v_add_u32 v4, v4, v5
    v_and_b32 v5, 3, v2
    v_lshlrev_b32 v5, 3, v5
    v_add_u32 v4, v4, v5
    s_lshl_b32 s46, s32, 11
    s_add_u32 s46, s46, s44
    s_add_u32 s46, s46, 18432
    v_add_u32 v7, s46, v4              ; V addr
    s_sub_i32 s49, 8, s36
    s_max_i32 s49, s49, 0
    """)
    for r in range(16):
        k(f"v_mov_b32 v{O+r}, 0")
    k.stamp()
    k("s_waitcnt vmcnt(0)\ns_barrier")
    k.stamp()
    attn_core(k, S, Q1, Q2, O, TMP, "v14", "v15", "v7", 49, MASK)
    k.stamp()
    k(f"""
    v_lshrrev_b32 v4, 5, v2
    v_cmp_eq_u32 s[46:47], 0, v4
    s_nop 1
    v_cndmask_b32 v5, v{O+8}, v{O+12}, s[46:47]
    v_rcp_f32 v5, v5
    s_nop 0
    """)
    for r in range(12):
        k(f"v_mul_f32 v{O+r}, v{O+r}, v5")
    for r in range(6):
        k(f"v_cvt_pk_bf16_f32 v{TMP+r}, v{O+2*r}, v{O+2*r+1}")
    k(f"""
    v_and_b32 v8, 31, v2
    s_lshl_b32 s50, s36, 5
    v_add_u32 v8, s50, v8              ; token
    v_lshrrev_b32 v9, 4, v8            ; R16
    v_mul_u32_u24 v9, 20*1024, v9
    v_and_b32 v8, 15, v8
    v_lshlrev_b32 v8, 4, v8            ; (token&15)*16
    v_add_u32 v9, v9, v8
    ; p = 5g + 2hd + h
    s_mul_i32 s50, s31, 5
    s_lshl_b32 s51, s33, 1
    s_add_u32 s51, s51, s50
    v_add_u32 v10, s51, v4             ; p
    v_lshrrev_b32 v11, 2, v10          ; s32
    v_lshlrev_b32 v11, 10, v11
    v_and_b32 v10, 3, v10
    v_lshlrev_b32 v10, 8, v10          ; q*256
    v_add3_u32 v10, v9, v10, v11
    buffer_store_dwordx4 v[{TMP}:{TMP+3}], v10, s[40:43], 0 offen
    s_add_u32 s50, s50, 4
    s_lshr_b32 s51, s50, 2
    s_lshl_b32 s51, s51, 10
    s_and_b32 s50, s50, 3
    s_lshl_b32 s50, s50, 8
    s_add_u32 s50, s50, s51
    s_lshl_b32 s51, s33, 3
    s_add_u32 s50, s50, s51
    s_mov_b64 exec, s[46:47]
    buffer_store_dwordx2 v[{TMP+4}:{TMP+5}], v9, s[40:43], s50 offen
    """)
    k.stamps_out(3, 4, 3)
    k("""
    L_attn_end:
    s_endpgm
    """)
    return k.text(), NWG, 512, 2*HB, 224, 224

def gemm_b_main(k, KS, D, ACC, WF, sX, sXoff, sW, sWoff, sWave):
    H = KS//2
    NS = H//2
    SB = 20*1024
    per = 4 + 5
    assert D*SB <= 160*1024
    def lds_addr(slot, idx):
        off = slot*SB + idx*1024
        base = off // 65536
        return f"v{3+base}", off - base*65536
    k(f"""
    s_mul_i32 s62, s{sWave}, 5120
    s_lshr_b32 s63, s{sWave}, 1
    s_mul_i32 s63, s63, {H}
    s_and_b32 s60, s{sWave}, 1
    s_add_u32 s63, s63, s60
    s_mul_i32 s63, s63, 5120
    s_add_u32 s63, s63, s{sWoff}
    """)
    def issue(i):
        for tt in range(2):
            k(f"s_add_u32 s60, s{sXoff}, {tt*KS*1024 + i*2048}")
            for ss in range(2):
                a = (tt*H + i*2 + ss)*4
                k(f"buffer_load_dwordx4 a[{a}:{a+3}], v3, s[{sX}:{sX+3}], s60 offen offset:{ss*1024}")
        slot = i % D
        k(f"s_add_u32 s61, s63, {i*2*5120}")
        k(f"s_add_u32 m0, s62, {slot*SB}")
        k("s_nop 0")
        for q in range(4):
            k(f"buffer_load_dwordx4 v3, s[{sW}:{sW+3}], s61 offen offset:{q*1024} lds")
        k(f"s_add_u32 s61, s61, 4096")
        k(f"s_add_u32 m0, m0, 4096")
        k("s_nop 0")
        k(f"buffer_load_dwordx4 v3, s[{sW}:{sW+3}], s61 offen lds")
    n0 = min(D, NS)
    for i in range(n0):
        issue(i)
    issued = n0
    k(f"""
    s_lshr_b32 s60, s{sWave}, 1
    s_mul_i32 s60, s60, 10240
    v_add_u32 v6, s60, v3
    v_add_u32 v7, 0x10000, v6
    v_add_u32 v8, 0x20000, v6
    """)
    def reads(i, ss, buf):
        for T in range(5):
            off = (i % D)*SB + (ss*5+T)*1024
            base = off // 65536
            r = WF + buf*20 + T*4
            k(f"ds_read_b128 v[{r}:{r+3}], v{6+base} offset:{off - base*65536}")
    k.stamp()
    k(f"s_waitcnt vmcnt({(issued-1)*per})")
    k("s_barrier")
    k.stamp()
    reads(0, 0, 0)
    buf = 0
    for i in range(NS):
        if i in (NS//4, NS//2, 3*NS//4): k.stamp()
        for ss in range(2):
            last = (ss == 1)
            if not last:
                reads(i, ss+1, buf ^ 1)
                k(f"s_waitcnt lgkmcnt(5)")
            else:
                if i+1 < NS:
                    n_after = (issued - (i+2)) * per
                    k(f"s_waitcnt vmcnt({n_after}) lgkmcnt(0)")
                    k("s_barrier")
                    if issued < NS:
                        issue(issued); issued += 1
                    reads(i+1, 0, buf ^ 1)
                else:
                    k("s_waitcnt lgkmcnt(0)")
            for tt in range(2):
                a = (tt*H + i*2 + ss)*4
                for T in range(5):
                    r = WF + buf*20 + T*4
                    c = ACC + (tt*5+T)*4
                    cs = f"v[{c}:{c+3}]"
                    src = "0" if (i == 0 and ss == 0) else cs
                    k(f"v_mfma_f32_16x16x32_bf16 {cs}, v[{r}:{r+3}], a[{a}:{a+3}], {src}")
            buf ^= 1
    k("s_nop 7")

def gemm_b_exchange(k, ACC, TMP, sWave):
    k("s_barrier")
    l1 = k.lab("xk1"); l2 = k.lab("xdone")
    k(f"""
    s_mul_i32 s60, s{sWave}, 5120
    v_add_u32 v6, s60, v3
    s_xor_b32 s61, s{sWave}, 2
    s_mul_i32 s61, s61, 5120
    v_add_u32 v7, s61, v3
    s_lshr_b32 s61, s{sWave}, 1
    s_cmp_eq_u32 s61, 1
    s_cbranch_scc1 {l1}
    """)
    for T in range(5):
        c = ACC + (5+T)*4
        k(f"ds_write_b128 v6, v[{c}:{c+3}] offset:{T*1024}")
    k(f"s_branch {l2}")
    k(f"{l1}:")
    for T in range(5):
        c = ACC + T*4
        k(f"ds_write_b128 v6, v[{c}:{c+3}] offset:{T*1024}")
    k("s_nop 1")
    for r in range(20):
        k(f"v_mov_b32 v{ACC+r}, v{ACC+20+r}")
    k(f"{l2}:")
    k("s_waitcnt lgkmcnt(0)\ns_barrier")
    for T in range(5):
        k(f"ds_read_b128 v[{TMP+4*T}:{TMP+4*T+3}], v7 offset:{T*1024}")
    k("s_waitcnt lgkmcnt(0)")
    for r in range(20):
        k(f"v_add_f32 v{ACC+r}, v{ACC+r}, v{TMP+r}")

def wgmap_b(k, sTB, sJ):
    k(f"""
    s_and_b32 s50, s2, 7
    s_lshr_b32 s51, s2, 3
    s_lshl_b32 s{sTB}, s50, 2
    s_and_b32 s52, s51, 3
    s_add_u32 s{sTB}, s{sTB}, s52
    s_lshr_b32 s{sJ}, s51, 2
    """)

def k_resid_gemm(which):
    name = which
    k = K(name)
    NWG = 256
    KS = 20 if which == "wo" else 48
    D = 5
    ACC, WF, RES, GV = 64, 16, 104, 114
    k(f"""
    s_cmp_ge_u32 s2, {NWG}
    s_cbranch_scc1 L_{name}_end
    """)
    k.vprof = 134
    k.stamp()
    k.kptr(4, "ws")
    k.kptr(6, "x" if which == "wo" else "out")
    k("""
    v_lshrrev_b32 v1, 6, v0
    v_and_b32 v2, 63, v0
    v_lshlrev_b32 v3, 4, v2
    v_readfirstlane_b32 s3, v1     ; wave
    v_add_u32 v4, 0x10000, v3
    v_add_u32 v5, 0x20000, v3
    """)
    wgmap_b(k, 30, 31)
    k("s_waitcnt lgkmcnt(0)")
    k.wsrd(8, 4, "O" if which == "wo" else "HH")
    k.wsrd(12, 4, "WO" if which == "wo" else "WD")
    k.srd(16, 6, 2048*1280)
    k.wsrd(20, 4, "X1")
    k.wsrd(24, 4, "MOD")
    k.wsrd(40, 4, "STAT")
    k(f"""
    s_and_b32 s32, s3, 1           ; mi
    s_lshr_b32 s33, s3, 1          ; kj
    s_lshl_b32 s34, s30, 2
    s_lshl_b32 s35, s32, 1
    s_add_u32 s34, s34, s35
    s_mul_i32 s35, s34, {KS}
    s_mul_i32 s36, s33, {KS//2}
    s_add_u32 s35, s35, s36
    s_lshl_b32 s35, s35, 10        ; X offset
    s_mul_i32 s36, s31, {KS*5*1024}   ; W offset
    s_add_u32 s37, s34, s33
    v_and_b32 v9, 15, v2
    v_lshrrev_b32 v10, 4, v2
    s_lshl_b32 s38, s37, 4
    v_add_u32 v11, s38, v9         ; token
    s_mul_i32 s39, s31, 80
    v_lshlrev_b32 v12, 2, v10
    v_add_u32 v12, s39, v12        ; n0 = 80j + 4q
    v_mul_u32_u24 v13, 1280, v11
    v_lshlrev_b32 v14, 1, v12
    v_add_u32 v13, v13, v14
    v_lshrrev_b32 v14, 5, v11
    v_mul_u32_u24 v14, 40*1024, v14
    v_and_b32 v15, 31, v11
    v_lshrrev_b32 v56, 1, v10
    v_lshlrev_b32 v56, 5, v56
    v_add_u32 v15, v15, v56
    v_lshlrev_b32 v15, 4, v15
    v_add_u32 v14, v14, v15
    v_and_b32 v15, 1, v10
    v_lshlrev_b32 v15, 3, v15
    v_add_u32 v14, v14, v15
    s_mul_i32 s44, s31, 5*1024
    v_add_u32 v14, s44, v14
    v_lshlrev_b32 v15, 2, v12
    """)
    part = 2 if which == "wo" else 5
    for T in range(5):
        if which == "wo":
            k(f"buffer_load_dwordx2 v[{RES+2*T}:{RES+2*T+1}], v13, s[16:19], 0 offen offset:{T*32}")
        else:
            k(f"s_mov_b32 s45, {T*1024}")
            k(f"buffer_load_dwordx2 v[{RES+2*T}:{RES+2*T+1}], v14, s[20:23], s45 offen")
        k(f"s_mov_b32 s45, {part*2560}")
        k(f"buffer_load_dwordx4 v[{GV+4*T}:{GV+4*T+3}], v15, s[24:27], s45 offen offset:{T*64}")
    gemm_b_main(k, KS, D, ACC, WF, 8, 35, 12, 36, 3)
    k.stamp()
    gemm_b_exchange(k, ACC, 16, 3)
    k.stamp()
    k("s_waitcnt vmcnt(0)")
    for T in range(5):
        for r in range(4):
            e = ACC + 4*T + r
            src = RES + 2*T + r//2
            if r % 2 == 0:
                k(f"v_lshlrev_b32 v16, 16, v{src}")
            else:
                k(f"v_and_b32 v16, 0xffff0000, v{src}")
            k(f"v_fma_f32 v{e}, v{e}, v{GV+4*T+r}, v16")
    for T in range(5):
        for r in range(2):
            k(f"v_cvt_pk_bf16_f32 v{20+2*T+r}, v{ACC+4*T+2*r}, v{ACC+4*T+2*r+1}")
    if which == "wo":
        for T in range(5):
            k(f"s_mov_b32 s45, {T*1024}")
            k(f"buffer_store_dwordx2 v[{20+2*T}:{21+2*T}], v14, s[20:23], s45 offen")
        k("v_mov_b32 v16, 0\nv_mov_b32 v17, 0")
        for r in range(10):
            k(f"v_lshlrev_b32 v18, 16, v{20+r}")
            k(f"v_and_b32 v19, 0xffff0000, v{20+r}")
            k(f"v_add_f32 v16, v16, v18")
            k(f"v_fmac_f32 v17, v18, v18")
            k(f"v_add_f32 v16, v16, v19")
            k(f"v_fmac_f32 v17, v19, v19")
        for sw in ("v_permlane16_swap_b32", "v_permlane32_swap_b32"):
            k(f"""
            v_mov_b32 v18, v16
            v_mov_b32 v19, v17
            s_nop 1
            {sw} v16, v18
            {sw} v17, v19
            s_nop 1
            v_add_f32 v16, v16, v18
            v_add_f32 v17, v17, v19
            """)
        k("""
        v_lshlrev_b32 v18, 6, v11          ; token*64
        s_lshl_b32 s45, s31, 3
        v_cmp_gt_u32 vcc, 16, v2
        s_and_saveexec_b64 s[46:47], vcc
        buffer_store_dwordx2 v[16:17], v18, s[40:43], s45 offen
        """)
    else:
        for T in range(5):
            k(f"buffer_store_dwordx2 v[{20+2*T}:{21+2*T}], v13, s[16:19], 0 offen offset:{T*32}")
    k.stamps_out(4 if which == "wo" else 6, 4, 3)
    k(f"""
    L_{name}_end:
    s_endpgm
    """)
    nA = 2*(KS//2)*4
    return k.text(), NWG, 256, D*20*1024, 136+nA, 136

def wgmap_gu(k, sM, sN):
    k(f"""
    s_and_b32 s50, s2, 7
    s_lshr_b32 s51, s2, 3
    s_and_b32 s{sM}, s50, 1
    s_lshl_b32 s{sM}, s{sM}, 3
    s_and_b32 s52, s51, 7
    s_add_u32 s{sM}, s{sM}, s52
    s_lshr_b32 s{sN}, s50, 1
    s_lshl_b32 s{sN}, s{sN}, 2
    s_lshr_b32 s52, s51, 3
    s_add_u32 s{sN}, s{sN}, s52
    """)

def k_gu():
    k = K("gu")
    NWG = 256
    D = 5
    ACC, WF = 64, 16
    TAB = D*24*1024
    k(f"""
    s_cmp_ge_u32 s2, {NWG}
    s_cbranch_scc1 L_gu_end
    """)
    k.vprof = 176
    k.stamp()
    k.kptr(4, "ws")
    k("""
    v_lshrrev_b32 v1, 6, v0
    v_and_b32 v2, 63, v0
    v_lshlrev_b32 v3, 4, v2
    v_readfirstlane_b32 s3, v1     ; wave
    v_add_u32 v4, 0x10000, v3
    v_add_u32 v5, 0x20000, v3
    """)
    wgmap_gu(k, 30, 31)
    k("s_waitcnt lgkmcnt(0)")
    k.wsrd(8, 4, "X1"); k.wsrd(12, 4, "W2"); k.wsrd(16, 4, "CB2"); k.wsrd(20, 4, "STAT"); k.wsrd(24, 4, "HH")
    k(f"""
    s_lshl_b32 s32, s30, 2
    s_add_u32 s32, s32, s3         ; R32
    s_mul_i32 s33, s32, 40*1024    ; X offset
    s_mul_i32 s34, s31, 240*1024   ; W offset
    v_and_b32 v8, 31, v2
    s_lshl_b32 s35, s32, 5
    v_add_u32 v8, s35, v8          ; token
    v_lshlrev_b32 v9, 6, v8
    buffer_load_dwordx4 v[160:163], v9, s[20:23], 0 offen
    buffer_load_dwordx4 v[164:167], v9, s[20:23], 0 offen offset:16
    buffer_load_dwordx4 v[168:171], v9, s[20:23], 0 offen offset:32
    buffer_load_dwordx4 v[172:175], v9, s[20:23], 0 offen offset:48
    s_cmp_ge_u32 s3, 2
    s_cbranch_scc1 L_gu_notab
    s_lshl_b32 s36, s31, 11
    s_lshl_b32 s37, s3, 10
    s_add_u32 s36, s36, s37
    s_add_u32 m0, s37, {TAB}
    s_nop 0
    buffer_load_dwordx4 v3, s[16:19], s36 offen lds
    L_gu_notab:
    """)
    gemm_a_main(k, 6, D, ACC, WF, 8, 33, 12, 34, 3)
    k.stamp()
    k("""
    v_add_f32 v160, v160, v162
    v_add_f32 v161, v161, v163
    v_add_f32 v164, v164, v166
    v_add_f32 v165, v165, v167
    v_add_f32 v168, v168, v170
    v_add_f32 v169, v169, v171
    v_add_f32 v172, v172, v174
    v_add_f32 v173, v173, v175
    v_add_f32 v160, v160, v164
    v_add_f32 v161, v161, v165
    v_add_f32 v168, v168, v172
    v_add_f32 v169, v169, v173
    v_add_f32 v160, v160, v168
    v_add_f32 v161, v161, v169
    """)
    k(f"""
    v_mul_f32 v160, {fhex(1.0/640)}, v160       ; mu
    v_mul_f32 v161, {fhex(1.0/640)}, v161       ; E[x^2]
    v_fma_f32 v161, -v160, v160, v161           ; var
    v_max_f32 v161, 0, v161
    v_add_f32 v161, {fhex(1e-5)}, v161
    v_rsq_f32 v161, v161                        ; r
    v_lshrrev_b32 v7, 5, v2                     ; h
    v_lshlrev_b32 v6, 5, v7                     ; h*32
    v_add_u32 v6, {TAB}, v6
    v_lshrrev_b32 v9, 4, v8
    v_mul_u32_u24 v9, 48*1024, v9
    v_and_b32 v10, 15, v8
    v_lshlrev_b32 v10, 4, v10
    v_add_u32 v9, v9, v10
    v_lshlrev_b32 v10, 8, v7
    v_add_u32 v9, v9, v10
    s_mul_i32 s36, s31, 6                       ; T' base = 6j
    """)
    for T in range(6):
        acc = ACC + 16*T
        for a in range(4):
            k(f"ds_read_b128 v[{16+8*a}:{19+8*a}], v6 offset:{T*256 + a*64}")
            k(f"ds_read_b128 v[{20+8*a}:{23+8*a}], v6 offset:{T*256 + a*64 + 16}")
        k("s_waitcnt lgkmcnt(0)")
        for a in range(4):
            for r in range(4):
                e = acc + 4*a + r
                k(f"v_fma_f32 v{e}, -v160, v{16+8*a+r}, v{e}")
                k(f"v_fma_f32 v{e}, v{e}, v161, v{20+8*a+r}")
        for r in range(4):
            k(f"v_mul_f32 v{acc+r}, v{acc+r}, v{acc+4+r}")
            k(f"v_mul_f32 v{acc+8+r}, v{acc+8+r}, v{acc+12+r}")
        k(f"v_cvt_pk_bf16_f32 v48, v{acc}, v{acc+1}")
        k(f"v_cvt_pk_bf16_f32 v49, v{acc+2}, v{acc+3}")
        k(f"v_cvt_pk_bf16_f32 v50, v{acc+8}, v{acc+9}")
        k(f"v_cvt_pk_bf16_f32 v51, v{acc+10}, v{acc+11}")
        k(f"""
        s_add_u32 s37, s36, {T}
        s_lshr_b32 s38, s37, 1
        s_lshl_b32 s38, s38, 10
        s_and_b32 s37, s37, 1
        s_lshl_b32 s37, s37, 9
        s_add_u32 s38, s38, s37
        buffer_store_dwordx4 v[48:51], v9, s[24:27], s38 offen
        s_nop 1
        """)
    k.stamps_out(5, 4, 3)
    k("""
    L_gu_end:
    s_endpgm
    """)
    return k.text(), NWG, 256, TAB + 2048, 180+160, 180

def build(kernels):
    launches = []; body = ""; desc = ""
    for name, fn in kernels:
        text, nwg, blk, lds, nv, acc = fn()
        kn = name + "_kernel"
        launches.append((kn, nwg, blk, lds))
        body += kern_begin(kn) + text
        desc += kern_desc(kn, nv, acc)
    return header(launches) + body + '.section .rodata,"a"\n' + desc

V1 = [("mod", k_mod), ("prep", k_prep), ("qkv", k_qkv), ("attn", k_attn),
      ("wo", lambda: k_resid_gemm("wo")), ("gu", k_gu), ("down", lambda: k_resid_gemm("down"))]

if __name__ == "__main__":
    out = sys.argv[1] if len(sys.argv) > 1 else "cdna_kernels/" + NAME + ".s"
    if len(sys.argv) > 2 and sys.argv[2] == "prof": PROF = True
    open(out, "w").write(build(V1))
    print("written", out)
```

```python
import gen
def k_probe(per_wg_kb, srcs):
    def f():
        k = gen.K("probe")
        k("s_cmp_ge_u32 s2, 256\ns_cbranch_scc1 L_probe_end")
        k("s_memrealtime s[40:41]")
        k.kptr(6, "dbg")
        for i, (key, size) in enumerate(srcs):
            k.kptr(44+2*i, key)
        k("v_and_b32 v2, 63, v0\nv_lshlrev_b32 v3, 4, v0\ns_waitcnt lgkmcnt(0)")
        k.srd(12, 6, 256)
        k("s_memrealtime s[42:43]")
        n = 0
        for i, (key, size) in enumerate(srcs):
            k.srd(8, 44+2*i, size)
            per = size // 256 // 4096 * 4096
            k(f"s_mul_i32 s30, s2, {per}")
            for j in range(per // 4096):
                r = 8 + 4*(n % 50); n += 1
                k(f"buffer_load_dwordx4 v[{r}:{r+3}], v3, s[8:11], s30 offen\ns_add_u32 s30, s30, 4096")
                if n % 40 == 0: k("s_waitcnt vmcnt(20)")
        k("s_waitcnt vmcnt(0)\ns_memrealtime s[60:61]\ns_waitcnt lgkmcnt(0)")
        k("""
        s_cmp_ge_u32 s2, 8
        s_cbranch_scc1 L_probe_end
        s_sub_u32 s42, s42, s40
        s_sub_u32 s60, s60, s40
        v_mov_b32 v4, s42
        v_mov_b32 v5, s60
        s_lshl_b32 s30, s2, 3
        v_mov_b32 v6, s30
        v_cmp_eq_u32 vcc, 0, v0
        s_and_saveexec_b64 s[32:33], vcc
        buffer_store_dwordx2 v[4:5], v6, s[12:15], 0 offen
        L_probe_end:
        s_endpgm
        """)
        return k.text(), 256, 256, 0, 256, 256
    return f
allin = [("x", 2560*1024), ("wqkv", 2400*1024), ("wo", 800*1024), ("bx", 2560*1024), ("wg", 1920*1024), ("wu", 1920*1024), ("wd", 1920*1024), ("wmod", 4800*1024)]
open("diag_bx.s","w").write(gen.build([("probe", k_probe(0, [("bx", 2560*1024)]))] + gen.V1))
open("diag_all.s","w").write(gen.build([("probe", k_probe(0, allin))] + gen.V1))
open("diag_none.s","w").write(gen.build([("probe", k_probe(0, []))] + gen.V1))
```

```python
import sys

NAME = "adaLN_cond__sliding_block__glu_gated_bilinear__prompt"

KA = dict(x=0, wqkv=8, wo=16, bx=24, wg=32, wu=40, wd=48, c=56, wmod=64, out=72, dbg=80, ws=88)
WS = {}
_off = 0
def _ws(name, size):
    global _off
    _off = (_off + 4095) // 4096 * 4096
    WS[name] = (_off, size)
    _off += size
_ws("MOD", 3840*4)
_ws("H1", 64*40*1024)
_ws("W1", 16*40*4*1024)
_ws("W2", 16*40*6*1024)
_ws("CB2", 16*2048)
_ws("WO", 8*20*5*1024)
_ws("WD", 8*48*5*1024)
_ws("QF1", 32*64*1024)
_ws("QF2", 32*64*512)
_ws("KF1", 32*64*1024)
_ws("KF2", 32*64*512)
_ws("VR", 32*2048*64)
_ws("O", 128*20*1024)
_ws("X1", 64*40*1024)
_ws("STAT", 2048*8*8)
_ws("HH", 128*48*1024)

_ws("FLAGS", 64*1024)
PROF = False
_ws("PROF", 4*256*8*256)
class K:
    def __init__(self, name):
        self.name = name
        self.lines = []
        self.nlab = 0
        self.nstamp = 0
        self.vprof = 63
    def stamp(self):
        if not PROF: return
        i = self.nstamp; self.nstamp += 1
        if i == 0:
            self(f"v_mov_b32 v{self.vprof}, -1")
            self("s_memrealtime s[100:101]")
            self("s_waitcnt lgkmcnt(0)")
            self(f"v_writelane_b32 v{self.vprof}, s100, 62")
        self("s_memtime s[100:101]")
        self("s_waitcnt lgkmcnt(0)")
        self(f"v_writelane_b32 v{self.vprof}, s100, {i}")
    def rstamp(self, lane):
        if not PROF: return
        self("s_memrealtime s[100:101]")
        self("s_waitcnt lgkmcnt(0)")
        self(f"v_writelane_b32 v{self.vprof}, s100, {lane}")
    def stamps_out(self, kidx, sws, swave):
        if not PROF: return
        lab = self.lab("nostamp")
        self(f"s_mov_b64 exec, -1")
        self(f"s_waitcnt lgkmcnt(0) vmcnt(0)")
        self.stamp()
        self("s_memrealtime s[100:101]")
        self("s_waitcnt lgkmcnt(0)")
        self(f"v_writelane_b32 v{self.vprof}, s100, 63")
        self.wsrd(68, sws, "PROF")
        self(f"s_lshl_b32 s66, s2, 3")
        self(f"s_add_u32 s66, s66, s{swave}")
        self(f"s_lshl_b32 s66, s66, 8")
        self(f"s_add_u32 s66, s66, {(kidx % 4)*256*8*256}")
        self(f"v_mbcnt_lo_u32_b32 v0, -1, 0")
        self(f"v_mbcnt_hi_u32_b32 v0, -1, v0")
        self(f"v_lshlrev_b32 v0, 2, v0")
        self(f"buffer_store_dword v{self.vprof}, v0, s[68:71], s66 offen")
        self(f"{lab}:")
    def __call__(self, s=""):
        for l in s.split("\n"):
            l = l.strip()
            if l:
                self.lines.append(("" if l.endswith(":") else "  ") + l)
    def lab(self, base):
        self.nlab += 1
        return f"L_{self.name}_{base}_{self.nlab}"
    def text(self):
        return "\n".join(self.lines) + "\n"
    def kptr(self, sreg, key):
        self(f"s_load_dwordx2 s[{sreg}:{sreg+1}], s[0:1], {KA[key]}")
    def srd(self, d, base, size, add=0):
        if add:
            self(f"s_add_u32 s{d}, s{base}, {add:#x}")
            self(f"s_addc_u32 s{d+1}, s{base+1}, 0")
        else:
            self(f"s_mov_b32 s{d}, s{base}")
            self(f"s_mov_b32 s{d+1}, s{base+1}")
        self(f"s_and_b32 s{d+1}, s{d+1}, 0xffff")
        self(f"s_mov_b32 s{d+2}, {size:#x}")
        self(f"s_mov_b32 s{d+3}, 0x20000")
    def wsrd(self, d, wsbase, key):
        o, sz = WS[key]
        self.srd(d, wsbase, sz, o)

def header(launches):
    s = "; adaLN + sliding-window attention + GLU block for MI355X (gfx950), generated from a Python script\n"
    for k, g, b, lds in launches:
        s += f"; @launch kernel={k} grid=({g},1,1) block=({b},1,1) lds={lds}\n"
    s += '.amdgcn_target "amdgcn-amd-amdhsa--gfx950"\n.text\n'
    return s

def kern_begin(name):
    return f".globl {name}\n.p2align 8\n.type {name},@function\n{name}:\n"

def kern_desc(name, nvgpr, accoff, nsgpr=102):
    return f""".p2align 6
.amdhsa_kernel {name}
  .amdhsa_next_free_vgpr {nvgpr}
  .amdhsa_next_free_sgpr {nsgpr}
  .amdhsa_accum_offset {accoff}
  .amdhsa_group_segment_fixed_size 0
  .amdhsa_kernarg_size 96
  .amdhsa_user_sgpr_count 2
  .amdhsa_user_sgpr_kernarg_segment_ptr 1
  .amdhsa_system_sgpr_workgroup_id_x 1
  .amdhsa_float_denorm_mode_32 3
.end_amdhsa_kernel
"""

LOG2E = 1.4426950408889634
import struct
def f2u(x): return struct.unpack("<I", struct.pack("<f", x))[0]
def fhex(x): return f"{f2u(x):#010x}"

def k_mod():
    k = K("mod")
    NWG = 120
    k(f"""
    s_cmp_ge_u32 s2, {NWG}
    s_cbranch_scc1 L_mod_end
    """)
    k.vprof = 95
    k.stamp()
    k.kptr(4, "c"); k.kptr(6, "wmod"); k.kptr(8, "ws")
    k("v_lshrrev_b32 v1, 6, v0\ns_nop 0\nv_readfirstlane_b32 s3, v1")
    k("""
    v_and_b32 v1, 3, v0            ; cc
    v_lshrrev_b32 v2, 2, v0        ; rg 0..63
    s_waitcnt lgkmcnt(0)
    """)
    k.srd(12, 4, 1280)
    k.srd(16, 6, 640*7680)
    k.wsrd(20, 8, "MOD")
    k.wsrd(32, 8, "FLAGS")
    k("""
    ; zero the hand-off words used by later launches: WGs 0..15 clear 4 KB each
    s_cmp_ge_u32 s2, 16
    s_cbranch_scc1 L_mod_noz
    v_lshlrev_b32 v3, 4, v0
    s_lshl_b32 s25, s2, 12
    v_mov_b32 v4, 0
    v_mov_b32 v5, 0
    v_mov_b32 v6, 0
    v_mov_b32 v7, 0
    buffer_store_dwordx4 v[4:7], v3, s[32:35], s25 offen
    s_nop 1
    L_mod_noz:
    v_lshlrev_b32 v3, 1, v2
    s_mov_b32 s24, 7680
    v_mul_lo_u32 v4, v2, s24       ; row*7680
    v_lshlrev_b32 v5, 4, v1        ; cc*16
    v_add_u32 v4, v4, v5
    s_lshl_b32 s25, s2, 6
    v_add_u32 v4, s25, v4
    """)
    for it in range(10):
        k(f"buffer_load_ushort v{10+it}, v3, s[12:15], 0 offen offset:{it*128}")
    for it in range(10):
        k(f"s_mov_b32 s26, {it*64*7680}")
        k(f"buffer_load_dwordx4 v[{20+4*it}:{23+4*it}], v4, s[16:19], s26 offen")
    k("s_waitcnt vmcnt(10)")
    k(f"s_mov_b32 s27, {fhex(-LOG2E)}")
    for it in range(10):
        k(f"v_lshlrev_b32 v{10+it}, 16, v{10+it}")
    for it in range(10):
        k(f"v_mul_f32 v{60+it}, s27, v{10+it}")
    for it in range(10):
        k(f"v_exp_f32 v{60+it}, v{60+it}")
    k("s_nop 0")
    for it in range(10):
        k(f"v_add_f32 v{60+it}, 1.0, v{60+it}")
    for it in range(10):
        k(f"v_rcp_f32 v{60+it}, v{60+it}")
    k("s_nop 0")
    for it in range(10):
        k(f"v_mul_f32 v{10+it}, v{10+it}, v{60+it}")
    for it in range(10):
        k(f"v_cvt_pk_bf16_f32 v{10+it}, v{10+it}, v{10+it}")
    for it in range(10):
        k(f"v_lshlrev_b32 v{10+it}, 16, v{10+it}")
    for j in range(8):
        k(f"v_mov_b32 v{70+j}, 0")
    for it in range(10):
        k(f"s_waitcnt vmcnt({9-it})")
        for r in range(4):
            w = 20+4*it+r
            k(f"v_lshlrev_b32 v80, 16, v{w}")
            k(f"v_and_b32 v81, 0xffff0000, v{w}")
            k(f"v_fmac_f32 v{70+2*r}, v{10+it}, v80")
            k(f"v_fmac_f32 v{71+2*r}, v{10+it}, v81")
    k("s_nop 1")
    for sh in (4, 8):
        for j in range(8):
            k(f"v_add_f32_dpp v{82+j}, v{70+j}, v{70+j} row_ror:{sh} row_mask:0xf bank_mask:0xf")
        k("s_nop 1")
        for j in range(8):
            k(f"v_mov_b32 v{70+j}, v{82+j}")
        k("s_nop 1")
    k("""
    v_lshrrev_b32 v5, 4, v0
    v_lshlrev_b32 v5, 7, v5        ; *128 bytes
    v_lshlrev_b32 v6, 5, v1        ; cc*32
    v_add_u32 v5, v5, v6
    v_and_b32 v6, 12, v0
    v_cmp_eq_u32 vcc, 0, v6
    s_and_saveexec_b64 s[28:29], vcc
    ds_write_b128 v5, v[70:73]
    ds_write_b128 v5, v[74:77] offset:16
    s_mov_b64 exec, s[28:29]
    s_waitcnt lgkmcnt(0)
    s_barrier
    v_cmp_gt_u32 vcc, 32, v0
    s_and_saveexec_b64 s[28:29], vcc
    s_cbranch_execz L_mod_end
    v_lshlrev_b32 v5, 2, v0
    """)
    for p in range(16):
        k(f"ds_read_b32 v{20+p}, v5 offset:{p*128}")
    k("s_waitcnt lgkmcnt(0)")
    for p in range(1, 16):
        k(f"v_add_f32 v20, v20, v{20+p}")
    k("""
    v_cvt_pk_bf16_f32 v20, v20, v20
    v_lshlrev_b32 v20, 16, v20
    s_cmp_ge_u32 s2, 20
    s_cselect_b32 s26, 1, 0
    s_cmp_lt_u32 s2, 40
    s_cselect_b32 s27, s26, 0
    s_cmp_ge_u32 s2, 80
    s_cselect_b32 s26, 1, 0
    s_cmp_lt_u32 s2, 100
    s_cselect_b32 s26, s26, 0
    s_or_b32 s26, s26, s27
    s_cmp_eq_u32 s26, 0
    s_cbranch_scc1 L_mod_store
    v_add_f32 v20, 1.0, v20
    v_cvt_pk_bf16_f32 v20, v20, v20
    v_lshlrev_b32 v20, 16, v20
    L_mod_store:
    s_lshl_b32 s25, s2, 7
    v_add_u32 v5, s25, v5
    buffer_store_dword v20, v5, s[20:23], 0 offen
    """)
    k.stamps_out(0, 8, 3)
    k("""
    L_mod_end:
    s_endpgm
    """)
    return k.text(), NWG, 256, 4096, 96, 96


def k_prep():
    k = K("prep")
    NWG = 304
    k(f"""
    s_cmp_ge_u32 s2, {NWG}
    s_cbranch_scc1 L_prep_end
    """)
    k.kptr(4, "ws")
    k("""
    v_lshrrev_b32 v1, 6, v0
    v_and_b32 v2, 63, v0           ; lane
    s_nop 0
    v_readfirstlane_b32 s3, v1     ; wave
    s_cmp_ge_u32 s2, 240
    s_cbranch_scc1 L_prep_h1
    s_cmp_ge_u32 s2, 200
    s_cbranch_scc1 L_prep_wd
    s_cmp_ge_u32 s2, 160
    s_cbranch_scc1 L_prep_wo
    s_cmp_ge_u32 s2, 64
    s_cbranch_scc1 L_prep_w2
    """)
    k.kptr(6, "wqkv")
    k("""
    s_lshr_b32 s30, s2, 2          ; g
    s_and_b32 s31, s2, 3           ; T
    s_lshr_b32 s32, s31, 1
    s_lshl_b32 s33, s30, 1
    s_add_u32 s33, s33, s32        ; head = 2g + (T>>1)
    s_mul_i32 s33, s33, 20         ; head*20
    s_and_b32 s34, s31, 1
    s_lshl_b32 s34, s34, 5         ; 32*(T&1)
    v_and_b32 v3, 31, v2
    v_add_u32 v3, s34, v3          ; sl' 0..63
    v_add_u32 v4, s33, v3          ; Q col
    v_add_u32 v5, 616, v4          ; K col (640-24)
    v_add_u32 v6, 1236, v4         ; V col (1280-44)
    v_cmp_gt_u32 vcc, 44, v3
    s_nop 1
    v_cndmask_b32 v6, v6, v5, vcc  ; sl'<44 ? K : V
    v_cmp_gt_u32 vcc, 24, v3
    s_nop 1
    v_mov_b32 v7, 0x20000000
    v_cndmask_b32 v6, v6, v7, vcc
    v_cmp_gt_u32 vcc, 20, v3
    s_nop 1
    v_cndmask_b32 v6, v6, v4, vcc  ; sl'<20 -> Q
    v_lshlrev_b32 v6, 1, v6
    v_lshrrev_b32 v7, 5, v2        ; h
    s_mov_b32 s35, 8*3840
    v_mul_lo_u32 v7, v7, s35
    v_add_u32 v6, v6, v7           ; voffset
    s_waitcnt lgkmcnt(0)
    """)
    k.srd(8, 6, 640*3840)
    k.wsrd(12, 4, "W1")
    k("""
    v_lshlrev_b32 v8, 4, v2        ; lane*16
    s_mul_i32 s36, s30, 160*1024
    s_lshl_b32 s37, s31, 10
    s_add_u32 s36, s36, s37
    """)
    pure_copy(k, nsteps_per_wave=10, rowstride=3840, rows_per_step=16, dst_step=4096, rowmap=None)
    k("s_branch L_prep_end")

    k("L_prep_wo:")
    k.kptr(6, "wo")
    k("""
    s_sub_u32 s30, s2, 160
    s_mul_i32 s31, s30, 13108
    s_lshr_b32 s31, s31, 16        ; j
    s_mul_i32 s32, s31, 5
    s_sub_u32 s32, s30, s32        ; T
    v_and_b32 v3, 15, v2           ; slot
    s_mul_i32 s33, s31, 80
    s_lshl_b32 s34, s32, 4
    s_add_u32 s33, s33, s34
    v_add_u32 v6, s33, v3
    v_lshlrev_b32 v6, 1, v6        ; col*2
    v_lshrrev_b32 v7, 4, v2        ; q
    s_waitcnt lgkmcnt(0)
    """)
    k.srd(8, 6, 640*1280)
    k.wsrd(12, 4, "WO")
    k("""
    v_lshlrev_b32 v8, 4, v2
    s_mul_i32 s36, s31, 100*1024
    s_lshl_b32 s37, s32, 10
    s_add_u32 s36, s36, s37
    """)
    for it in range(5):
        k(f"""
        s_lshl_b32 s40, s3, 2
        s_add_u32 s40, s40, {it*16}
        v_add_u32 v9, s40, v7             ; p
        s_mov_b32 s41, 13108
        v_mul_lo_u32 v10, v9, s41
        v_lshrrev_b32 v10, 16, v10        ; g
        v_mul_u32_u24 v11, 5, v10
        v_sub_u32 v11, v9, v11            ; pp
        v_mul_u32_u24 v10, 40, v10        ; 40g
        v_and_b32 v12, 1, v11
        v_lshlrev_b32 v12, 2, v12         ; 4*(pp&1)
        v_lshrrev_b32 v13, 1, v11
        v_mul_u32_u24 v13, 20, v13        ; 20*(pp>>1)
        v_add_u32 v12, v12, v13
        v_add_u32 v13, 8, v12             ; base1
        v_cmp_eq_u32 vcc, 4, v11
        s_nop 1
        v_mov_b32 v14, 16
        v_cndmask_b32 v12, v12, v14, vcc
        v_mov_b32 v14, 36
        v_cndmask_b32 v13, v13, v14, vcc
        v_add_u32 v12, v12, v10
        v_add_u32 v13, v13, v10
        v_mul_u32_u24 v12, 1280, v12
        v_mul_u32_u24 v13, 1280, v13
        v_add_u32 v12, v12, v6
        v_add_u32 v13, v13, v6
        """)
        for j in range(8):
            base = "v12" if j < 4 else "v13"
            k(f"buffer_load_ushort v{100 + 8*it + j}, {base}, s[8:11], 0 offen offset:{(j%4)*1280}")
    k("s_waitcnt vmcnt(0)")
    for it in range(5):
        d = 20 + 4*it
        for r in range(4):
            k(f"v_lshl_or_b32 v{d+r}, v{100+8*it+2*r+1}, 16, v{100+8*it+2*r}")
        k(f"s_add_u32 s40, s3, {4*it}")
        stage_major(k, 40, 10)
        k(f"s_mul_i32 s40, s40, 5120")
        k(f"s_add_u32 s40, s40, s36")
        k(f"buffer_store_dwordx4 v[{d}:{d+3}], v8, s[12:15], s40 offen")
    k("s_branch L_prep_end")

    k("L_prep_wd:")
    k.kptr(6, "wd")
    k("""
    s_sub_u32 s30, s2, 200
    s_mul_i32 s31, s30, 13108
    s_lshr_b32 s31, s31, 16        ; j
    s_mul_i32 s32, s31, 5
    s_sub_u32 s32, s30, s32        ; T
    v_and_b32 v3, 15, v2           ; slot
    s_mul_i32 s33, s31, 80
    s_lshl_b32 s34, s32, 4
    s_add_u32 s33, s33, s34
    v_add_u32 v6, s33, v3
    v_lshlrev_b32 v6, 1, v6        ; col*2
    v_lshrrev_b32 v7, 4, v2        ; q
    ; row(j) = 32 s + 16*(q>>1) + 4*(q&1) + j (j<4) ; +8 + (j-4) (j>=4)
    v_lshrrev_b32 v9, 1, v7
    v_lshlrev_b32 v9, 4, v9
    v_and_b32 v10, 1, v7
    v_lshlrev_b32 v10, 2, v10
    v_add_u32 v9, v9, v10
    v_mul_u32_u24 v9, 1280, v9
    v_add_u32 v12, v6, v9          ; rows +0..3
    v_add_u32 v13, 8*1280, v12     ; rows +8..11
    s_waitcnt lgkmcnt(0)
    """)
    k.srd(8, 6, 1536*1280)
    k.wsrd(12, 4, "WD")
    k("""
    v_lshlrev_b32 v8, 4, v2
    s_mul_i32 s36, s31, 240*1024
    s_lshl_b32 s37, s32, 10
    s_add_u32 s36, s36, s37
    """)
    for half in range(2):
        for it in range(6):
            st = half*6 + it
            k(f"s_add_u32 s40, s3, {4*st}")
            k(f"s_mul_i32 s41, s40, {32*1280}")
            for j in range(8):
                base = "v12" if j < 4 else "v13"
                k(f"buffer_load_ushort v{100 + 8*it + j}, {base}, s[8:11], s41 offen offset:{(j%4)*1280}")
        k("s_waitcnt vmcnt(0)")
        for it in range(6):
            st = half*6 + it
            d = 20 + 4*it
            for r in range(4):
                k(f"v_lshl_or_b32 v{d+r}, v{100+8*it+2*r+1}, 16, v{100+8*it+2*r}")
            k(f"s_add_u32 s40, s3, {4*st}")
            stage_major(k, 40, 24)
            k(f"s_mul_i32 s40, s40, 5120")
            k(f"s_add_u32 s40, s40, s36")
            k(f"buffer_store_dwordx4 v[{d}:{d+3}], v8, s[12:15], s40 offen")
        k("s_nop 1")
    k("s_branch L_prep_end")

    k("L_prep_w2:")
    k.kptr(6, "wg"); k.kptr(16, "wu")
    k("""
    s_sub_u32 s30, s2, 64
    s_mul_i32 s31, s30, 10923      ; /6 (id<96)
    s_lshr_b32 s31, s31, 16        ; j
    s_mul_i32 s32, s31, 6
    s_sub_u32 s32, s30, s32        ; T
    v_and_b32 v3, 31, v2           ; slot
    v_lshrrev_b32 v4, 4, v3
    v_lshlrev_b32 v4, 3, v4
    v_and_b32 v5, 7, v3
    v_add_u32 v4, v4, v5
    s_mul_i32 s33, s31, 96
    s_lshl_b32 s34, s32, 4
    s_add_u32 s33, s33, s34
    v_add_u32 v4, s33, v4
    v_lshlrev_b32 v6, 1, v4        ; col*2
    v_lshrrev_b32 v7, 5, v2        ; h
    s_mov_b32 s35, 8*3072
    v_mul_lo_u32 v9, v7, s35
    v_add_u32 v6, v6, v9           ; voffset
    v_and_b32 v9, 8, v2
    v_cmp_eq_u32 s[44:45], 0, v9
    v_cmp_ne_u32 s[46:47], 0, v9
    v_lshlrev_b32 v10, 5, v7
    s_waitcnt lgkmcnt(0)
    """)
    k.srd(8, 6, 640*3072)
    k.srd(20, 16, 640*3072)
    k.wsrd(12, 4, "W2")
    k.wsrd(24, 4, "MOD")
    k("""
    v_lshlrev_b32 v8, 4, v2
    s_mul_i32 s36, s31, 240*1024
    s_lshl_b32 s37, s32, 10
    s_add_u32 s36, s36, s37        ; dest: j*240K + T*1K (+ s*6K)
    v_mov_b32 v14, 0               ; cs
    v_mov_b32 v15, 0               ; bs
    s_mov_b32 s38, 0               ; it
    L_prep_w2_loop:
    s_lshl_b32 s39, s38, 2
    s_add_u32 s39, s39, s3
    s_mul_i32 s40, s39, 16*3072
    s_lshl_b32 s42, s39, 6         ; s*64 bytes
    s_add_u32 s43, s42, 4*640*4    ; c2
    buffer_load_dwordx4 v[40:43], v10, s[24:27], s43 offen
    buffer_load_dwordx4 v[44:47], v10, s[24:27], s43 offen offset:16
    s_add_u32 s43, s42, 3*640*4    ; sb
    buffer_load_dwordx4 v[48:51], v10, s[24:27], s43 offen
    buffer_load_dwordx4 v[52:55], v10, s[24:27], s43 offen offset:16
    """)
    k("s_mov_b64 exec, s[44:45]")
    for j in range(8):
        k(f"s_add_u32 s41, s40, {j*3072}")
        k(f"buffer_load_ushort v{20+j}, v6, s[8:11], s41 offen")
    k("s_mov_b64 exec, s[46:47]")
    for j in range(8):
        k(f"s_add_u32 s41, s40, {j*3072}")
        k(f"buffer_load_ushort v{20+j}, v6, s[20:23], s41 offen")
    k("s_mov_b64 exec, -1")
    k("s_waitcnt vmcnt(0)")
    for j in range(8):
        k(f"v_lshlrev_b32 v{20+j}, 16, v{20+j}")
    for j in range(8):
        k(f"v_fmac_f32 v15, v{48+j}, v{20+j}")
        k(f"v_mul_f32 v{20+j}, v{40+j}, v{20+j}")
    for r in range(4):
        k(f"v_cvt_pk_bf16_f32 v{30+r}, v{20+2*r}, v{21+2*r}")
    for r in range(4):
        k(f"v_lshlrev_b32 v34, 16, v{30+r}")
        k(f"v_and_b32 v35, 0xffff0000, v{30+r}")
        k(f"v_add_f32 v14, v14, v34")
        k(f"v_add_f32 v14, v14, v35")
    k(f"""
    s_mul_i32 s40, s39, 6144
    s_add_u32 s40, s40, s36
    buffer_store_dwordx4 v[30:33], v8, s[12:15], s40 offen
    s_add_u32 s38, s38, 1
    s_cmp_lt_u32 s38, 10
    s_waitcnt vmcnt(0)
    s_cbranch_scc1 L_prep_w2_loop
    v_mov_b32 v16, v14
    v_mov_b32 v17, v15
    s_nop 1
    v_permlane32_swap_b32 v14, v16
    v_permlane32_swap_b32 v15, v17
    s_nop 1
    v_add_f32 v14, v14, v16
    v_add_f32 v15, v15, v17
    v_and_b32 v3, 31, v2
    v_lshlrev_b32 v4, 3, v3        ; slot*8
    s_lshl_b32 s39, s3, 8          ; wave*256
    v_add_u32 v4, s39, v4
    ds_write_b64 v4, v[14:15]
    s_waitcnt lgkmcnt(0)
    s_barrier
    s_cmp_lg_u32 s3, 0
    s_cbranch_scc1 L_prep_end
    v_lshlrev_b32 v4, 3, v3
    ds_read_b64 v[14:15], v4
    ds_read_b64 v[16:17], v4 offset:256
    ds_read_b64 v[18:19], v4 offset:512
    ds_read_b64 v[20:21], v4 offset:768
    s_waitcnt lgkmcnt(0)
    v_add_f32 v14, v14, v16
    v_add_f32 v15, v15, v17
    v_add_f32 v18, v18, v20
    v_add_f32 v19, v19, v21
    v_add_f32 v14, v14, v18
    v_add_f32 v15, v15, v19
    """)
    k.wsrd(52, 4, "CB2")
    k("""
    v_lshrrev_b32 v4, 2, v3
    v_lshlrev_b32 v4, 5, v4
    v_and_b32 v5, 3, v3
    v_lshlrev_b32 v5, 2, v5
    v_add_u32 v4, v4, v5
    s_lshl_b32 s39, s31, 11
    s_lshl_b32 s40, s32, 8
    s_add_u32 s39, s39, s40
    v_cmp_gt_u32 vcc, 32, v2
    s_and_saveexec_b64 s[48:49], vcc
    buffer_store_dword v14, v4, s[52:55], s39 offen
    buffer_store_dword v15, v4, s[52:55], s39 offen offset:16
    s_branch L_prep_end
    """)

    k("L_prep_h1:")
    k.kptr(6, "x")
    k("""
    s_sub_u32 s30, s2, 240         ; R32
    v_and_b32 v3, 31, v2
    v_lshrrev_b32 v7, 5, v2        ; h
    s_lshl_b32 s31, s30, 5
    v_add_u32 v4, s31, v3          ; token
    v_mul_u32_u24 v4, 1280, v4
    v_lshlrev_b32 v5, 4, v7        ; h*16 bytes
    v_add_u32 v4, v4, v5
    s_mul_i32 s32, s3, 320
    v_add_u32 v4, s32, v4
    v_lshlrev_b32 v10, 5, v7
    s_waitcnt lgkmcnt(0)
    """)
    k.srd(8, 6, 2048*1280)
    k.wsrd(12, 4, "H1")
    k.wsrd(24, 4, "MOD")
    for it in range(10):
        k(f"buffer_load_dwordx4 v[{20+4*it}:{23+4*it}], v4, s[8:11], 0 offen offset:{it*32}")
    k("s_waitcnt vmcnt(0)")
    for r in range(40):
        k(f"v_lshlrev_b32 v{64+2*r}, 16, v{20+r}")
        k(f"v_and_b32 v{65+2*r}, 0xffff0000, v{20+r}")
    k("v_mov_b32 v14, 0\nv_mov_b32 v15, 0")
    for e in range(0, 80, 2):
        k(f"v_add_f32 v14, v14, v{64+e}")
        k(f"v_add_f32 v15, v15, v{65+e}")
    k("""
    v_add_f32 v14, v14, v15
    v_mov_b32 v16, v14
    s_nop 1
    v_permlane32_swap_b32 v14, v16
    s_nop 1
    v_add_f32 v14, v14, v16
    v_lshlrev_b32 v5, 2, v3        ; token*4
    s_lshl_b32 s33, s3, 7          ; wave*128
    v_add_u32 v6, s33, v5
    ds_write_b32 v6, v14
    s_waitcnt lgkmcnt(0)
    s_barrier
    ds_read_b32 v14, v5
    ds_read_b32 v15, v5 offset:128
    ds_read_b32 v16, v5 offset:256
    ds_read_b32 v17, v5 offset:384
    s_waitcnt lgkmcnt(0)
    v_add_f32 v14, v14, v15
    v_add_f32 v16, v16, v17
    v_add_f32 v14, v14, v16
    """)
    k(f"v_mul_f32 v14, {fhex(1.0/640)}, v14     ; mean")
    for e in range(80):
        k(f"v_sub_f32 v{64+e}, v{64+e}, v14")
    k("v_mov_b32 v15, 0\nv_mov_b32 v16, 0")
    for e in range(0, 80, 2):
        k(f"v_fmac_f32 v15, v{64+e}, v{64+e}")
        k(f"v_fmac_f32 v16, v{65+e}, v{65+e}")
    k("""
    v_add_f32 v15, v15, v16
    v_mov_b32 v16, v15
    s_nop 1
    v_permlane32_swap_b32 v15, v16
    s_nop 1
    v_add_f32 v15, v15, v16
    ds_write_b32 v6, v15 offset:512
    s_waitcnt lgkmcnt(0)
    s_barrier
    ds_read_b32 v15, v5 offset:512
    ds_read_b32 v16, v5 offset:640
    ds_read_b32 v17, v5 offset:768
    ds_read_b32 v18, v5 offset:896
    s_waitcnt lgkmcnt(0)
    v_add_f32 v15, v15, v16
    v_add_f32 v17, v17, v18
    v_add_f32 v15, v15, v17
    """)
    k(f"v_mul_f32 v15, {fhex(1.0/640)}, v15")
    k(f"v_add_f32 v15, {fhex(1e-5)}, v15")
    k("v_rsq_f32 v15, v15\ns_nop 0")
    k("v_lshlrev_b32 v8, 4, v2")
    for it in range(10):
        k(f"""
        s_mul_i32 s34, s3, 640
        s_add_u32 s34, s34, {it*64}       ; s*64 bytes
        s_add_u32 s35, s34, 2560
        buffer_load_dwordx4 v[20:23], v10, s[24:27], s34 offen
        buffer_load_dwordx4 v[24:27], v10, s[24:27], s34 offen offset:16
        buffer_load_dwordx4 v[28:31], v10, s[24:27], s35 offen
        buffer_load_dwordx4 v[32:35], v10, s[24:27], s35 offen offset:16
        s_waitcnt vmcnt(0)
        """)
        for e in range(8):
            r = 64 + 8*it + e
            k(f"v_mul_f32 v{r}, v{r}, v15")
        for e in range(8):
            r = 64 + 8*it + e
            if e % 2 == 0:
                k(f"v_cvt_pk_bf16_f32 v36, v{r}, v{r+1}")
                k(f"v_lshlrev_b32 v{r}, 16, v36")
                k(f"v_and_b32 v{r+1}, 0xffff0000, v36")
        for e in range(8):
            r = 64 + 8*it + e
            k(f"v_fma_f32 v{r}, v{r}, v{28+e}, v{20+e}")
        for e in range(0, 8, 2):
            r = 64 + 8*it + e
            k(f"v_cvt_pk_bf16_f32 v{40+e//2}, v{r}, v{r+1}")
        k(f"""
        s_mul_i32 s34, s30, 40
        s_mul_i32 s35, s3, 10
        s_add_u32 s34, s34, s35
        s_add_u32 s34, s34, {it}
        s_lshl_b32 s34, s34, 10
        buffer_store_dwordx4 v[40:43], v8, s[12:15], s34 offen
        s_nop 1
        """)
    k("""
    L_prep_end:
    s_endpgm
    """)
    return k.text(), NWG, 256, 4096, 160, 160

STAGE_MAJOR = False
def stage_major(k, sreg, H):
    if not STAGE_MAJOR: return
    k(f"""
    s_cmp_ge_u32 s{sreg}, {H}
    s_cselect_b32 s56, {H}, 0
    s_cselect_b32 s57, 2, 0
    s_sub_u32 s{sreg}, s{sreg}, s56
    s_lshr_b32 s56, s{sreg}, 1
    s_lshl_b32 s56, s56, 2
    s_and_b32 s{sreg}, s{sreg}, 1
    s_add_u32 s{sreg}, s{sreg}, s56
    s_add_u32 s{sreg}, s{sreg}, s57
    """)

def pure_copy(k, nsteps_per_wave, rowstride, rows_per_step, dst_step, rowmap):
    for half in range(2):
        n = nsteps_per_wave // 2
        for it in range(n):
            st = half*n + it
            k(f"s_add_u32 s40, s3, {4*st}")
            k(f"s_mul_i32 s41, s40, {rows_per_step*rowstride}")
            for j in range(8):
                k(f"s_add_u32 s42, s41, {j*rowstride}")
                k(f"buffer_load_ushort v{100 + 8*it + j}, v6, s[8:11], s42 offen")
        k("s_waitcnt vmcnt(0)")
        for it in range(n):
            st = half*n + it
            d = 20 + 4*it
            for r in range(4):
                k(f"v_lshl_or_b32 v{d+r}, v{100+8*it+2*r+1}, 16, v{100+8*it+2*r}")
            k(f"s_add_u32 s40, s3, {4*st}")
            k(f"s_mul_i32 s40, s40, {dst_step}")
            k(f"s_add_u32 s40, s40, s36")
            k(f"buffer_store_dwordx4 v[{d}:{d+3}], v8, s[12:15], s40 offen")
        k("s_nop 1")

def gemm_a_main(k, NT, D, ACC, WF, sX, sXoff, sW, sWoff, sWave, extra_older=0):
    NS = 10
    KS = 4
    SB = KS*NT*1024
    nW = KS*NT//4
    per = KS + nW
    assert D*SB <= 160*1024
    def lds_addr(slot, idx):
        off = slot*SB + idx*1024
        base = off // 65536
        return f"v{3+base}", off - base*65536
    def issue(i):
        k(f"s_add_u32 s60, s{sXoff}, {i*KS*1024}")
        for ss in range(KS):
            a = (i*KS+ss)*4
            k(f"buffer_load_dwordx4 a[{a}:{a+3}], v3, s[{sX}:{sX+3}], s60 offen offset:{ss*1024}")
        slot = i % D
        k(f"s_add_u32 s61, s{sWoff}, {i*SB}")
        k(f"s_add_u32 s61, s61, s62")
        k(f"s_add_u32 m0, s62, {slot*SB}")
        done = 0
        while done < nW:
            n = min(4, nW-done)
            if done:
                k(f"s_add_u32 s61, s61, 4096")
                k(f"s_add_u32 m0, m0, 4096")
            k("s_nop 0")
            for q in range(n):
                k(f"buffer_load_dwordx4 v3, s[{sW}:{sW+3}], s61 offen offset:{q*1024} lds")
            done += n
    k(f"s_mul_i32 s62, s{sWave}, {nW*1024}")
    for i in range(min(D, NS)):
        issue(i)
    issued = min(D, NS)
    def reads(i, ss, buf):
        for T in range(NT):
            v, off = lds_addr(i % D, ss*NT+T)
            r = WF + buf*NT*4 + T*4
            k(f"ds_read_b128 v[{r}:{r+3}], {v} offset:{off}")
    k.stamp()
    k(f"s_waitcnt vmcnt({(issued-1)*per})")
    k("s_barrier")
    k.stamp()
    reads(0, 0, 0)
    buf = 0
    for i in range(NS):
        if i in (2, 5, 8): k.stamp()
        for ss in range(KS):
            last = (ss == KS-1)
            if not last:
                reads(i, ss+1, buf ^ 1)
                k(f"s_waitcnt lgkmcnt({NT})")
            else:
                if i+1 < NS:
                    n_after = (issued - (i+2)) * per
                    k(f"s_waitcnt vmcnt({n_after}) lgkmcnt(0)")
                    k("s_barrier")
                    if issued < NS:
                        issue(issued); issued += 1
                    reads(i+1, 0, buf ^ 1)
                else:
                    k("s_waitcnt lgkmcnt(0)")
            a = (i*KS+ss)*4
            for T in range(NT):
                r = WF + buf*NT*4 + T*4
                c = f"v[{ACC+16*T}:{ACC+16*T+15}]"
                src = "0" if (i == 0 and ss == 0) else c
                k(f"v_mfma_f32_32x32x16_bf16 {c}, v[{r}:{r+3}], a[{a}:{a+3}], {src}")
            buf ^= 1
    k("s_nop 15")

def wgmap_4x8(k, sM, sN):
    k(f"""
    s_and_b32 s50, s2, 7
    s_lshr_b32 s51, s2, 3
    s_lshr_b32 s{sM}, s50, 1
    s_lshl_b32 s{sM}, s{sM}, 2
    s_and_b32 s52, s51, 3
    s_add_u32 s{sM}, s{sM}, s52
    s_and_b32 s{sN}, s50, 1
    s_lshl_b32 s{sN}, s{sN}, 3
    s_lshr_b32 s52, s51, 2
    s_add_u32 s{sN}, s{sN}, s52
    """)

def k_qkv():
    k = K("qkv")
    NWG = 256
    ACC, WF = 64, 16
    k(f"""
    s_cmp_ge_u32 s2, {NWG}
    s_cbranch_scc1 L_qkv_end
    """)
    k.vprof = 60
    k.stamp()
    k.kptr(4, "ws")
    k("""
    v_lshrrev_b32 v1, 6, v0
    v_and_b32 v2, 63, v0
    v_lshlrev_b32 v3, 4, v2
    v_readfirstlane_b32 s3, v1     ; wave
    v_add_u32 v4, 0x10000, v3
    v_add_u32 v5, 0x20000, v3
    """)
    wgmap_4x8(k, 30, 31)
    k("s_waitcnt lgkmcnt(0)")
    k.wsrd(8, 4, "H1"); k.wsrd(12, 4, "W1")
    k("""
    s_lshl_b32 s32, s30, 2
    s_add_u32 s32, s32, s3         ; R32
    s_mul_i32 s33, s32, 40*1024    ; X offset
    s_mul_i32 s34, s31, 160*1024   ; W offset
    """)
    gemm_a_main(k, 4, 7, ACC, WF, 8, 33, 12, 34, 3)
    k.stamp()
    k.wsrd(16, 4, "QF1"); k.wsrd(20, 4, "QF2"); k.wsrd(24, 4, "KF1"); k.wsrd(28+8, 4, "KF2"); k.wsrd(40, 4, "VR")
    k("""
    v_lshlrev_b32 v6, 3, v2        ; lane*8
    v_lshrrev_b32 v7, 5, v2        ; h
    v_and_b32 v8, 31, v2
    s_lshl_b32 s44, s32, 5
    v_add_u32 v8, s44, v8          ; token
    v_lshlrev_b32 v8, 6, v8        ; token*64
    v_cmp_eq_u32 s[46:47], 0, v7   ; h==0 lanes
    """)
    for hd in range(2):
        t0 = ACC + 32*hd; t1 = t0 + 16
        P = 16
        for r in range(4): k(f"v_cvt_pk_bf16_f32 v{P+r}, v{t0+2*r}, v{t0+2*r+1}")
        for r in range(2): k(f"v_cvt_pk_bf16_f32 v{P+4+r}, v{t0+8+2*r}, v{t0+9+2*r}")
        for r in range(2): k(f"v_cvt_pk_bf16_f32 v{P+8+r}, v{t0+12+2*r}, v{t0+13+2*r}")
        for r in range(2): k(f"v_cvt_pk_bf16_f32 v{P+10+r}, v{t1+2*r}, v{t1+2*r+1}")
        for r in range(6): k(f"v_cvt_pk_bf16_f32 v{P+12+r}, v{t1+4+2*r}, v{t1+5+2*r}")
        k(f"""
        s_lshl_b32 s45, s31, 1
        s_add_u32 s45, s45, {hd}        ; head
        s_lshl_b32 s48, s45, 6
        s_add_u32 s48, s48, s32         ; head*64 + R32
        s_lshl_b32 s49, s48, 10
        s_lshl_b32 s53, s48, 9
        buffer_store_dwordx4 v[{P}:{P+3}], v3, s[16:19], s49 offen
        buffer_store_dwordx2 v[{P+4}:{P+5}], v6, s[20:23], s53 offen
        buffer_store_dwordx4 v[{P+8}:{P+11}], v3, s[24:27], s49 offen
        buffer_store_dwordx2 v[{P+12}:{P+13}], v6, s[36:39], s53 offen
        s_lshl_b32 s54, s45, 17         ; head*2048*64
        v_mov_b32 v{P+20}, 0x3f80
        v_mov_b32 v{P+21}, 0
        v_cndmask_b32 v{P+18}, v{P+12}, v{P+20}, s[46:47]
        v_cndmask_b32 v{P+19}, v{P+13}, v{P+21}, s[46:47]
        v_mov_b32 v9, 40
        v_cndmask_b32 v9, 0, v9, s[46:47]
        v_add_u32 v9, v8, v9
        buffer_store_dwordx2 v[{P+18}:{P+19}], v9, s[40:43], s54 offen
        v_lshlrev_b32 v9, 3, v7
        v_add_u32 v9, v8, v9
        buffer_store_dwordx2 v[{P+14}:{P+15}], v9, s[40:43], s54 offen offset:8
        buffer_store_dwordx2 v[{P+16}:{P+17}], v9, s[40:43], s54 offen offset:24
        v_cndmask_b32 v{P+22}, 0, v{P+20}, s[46:47]
        v_mov_b32 v{P+23}, 0
        buffer_store_dwordx2 v[{P+22}:{P+23}], v9, s[40:43], s54 offen offset:48
        s_nop 1
        """)
    k.stamps_out(2, 4, 3)
    k("""
    L_qkv_end:
    s_endpgm
    """)
    return k.text(), NWG, 256, 7*16384, 128+160, 128

def attn_core(k, S, Q1, Q2, O, TMP, vK1, vK2, vV, sFirst, MASK, vV2=None, k5=False):
    NEG = fhex(-1e30)
    for t in range(9):
        skip = k.lab("skipqk"); done = k.lab("doneqk")
        if t < 8:
            k(f"s_cmp_gt_u32 s{sFirst}, {t}")
            k(f"s_cbranch_scc1 {skip}")
        b = TMP + (t % 2)*6
        k(f"ds_read_b128 v[{b}:{b+3}], {vK1} offset:{t*1024}")
        k(f"ds_read_b64 v[{b+4}:{b+5}], {vK2} offset:{t*512}")
        k("s_waitcnt lgkmcnt(0)")
        s = S + 16*t
        k(f"v_mfma_f32_32x32x16_bf16 v[{s}:{s+15}], v[{b}:{b+3}], v[{Q1}:{Q1+3}], 0")
        k(f"v_mfma_f32_32x32x8_bf16 v[{s}:{s+15}], v[{b+4}:{b+5}], v[{Q2}:{Q2+1}], v[{s}:{s+15}]")
        if t < 8:
            k(f"s_branch {done}")
            k(f"{skip}:")
            for r in range(16):
                k(f"v_mov_b32 v{s+r}, {NEG}")
            k(f"{done}:")
    k("s_nop 15")
    k.stamp()
    k(f"v_mov_b32 v{TMP}, {NEG}")
    for r in range(16):
        m = f"s[{MASK+2*r}:{MASK+2*r+1}]"
        k(f"v_cndmask_b32 v{S+128+r}, v{TMP}, v{S+128+r}, {m}")
        k(f"v_cndmask_b32 v{S+r}, v{S+r}, v{TMP}, {m}")
    mx = TMP + 1
    k(f"v_max3_f32 v{mx}, v{S}, v{S+1}, v{S+2}")
    k(f"v_max3_f32 v{mx+1}, v{S+3}, v{S+4}, v{S+5}")
    e = 6
    while e + 3 < 144:
        k(f"v_max3_f32 v{mx}, v{mx}, v{S+e}, v{S+e+1}")
        k(f"v_max3_f32 v{mx+1}, v{mx+1}, v{S+e+2}, v{S+e+3}")
        e += 4
    k(f"v_max3_f32 v{mx}, v{mx}, v{S+142}, v{S+143}")
    k(f"v_max_f32 v{mx}, v{mx}, v{mx+1}")
    k(f"v_mov_b32 v{mx+1}, v{mx}")
    k("s_nop 1")
    k(f"v_permlane32_swap_b32 v{mx}, v{mx+1}")
    k("s_nop 1")
    k(f"v_max_f32 v{mx}, v{mx}, v{mx+1}")
    C = LOG2E * 20 ** -0.5
    k(f"s_mov_b32 s58, {fhex(C)}")
    k(f"v_mul_f32 v{mx}, s58, v{mx}")
    if k5: k("s_waitcnt lgkmcnt(0)\ns_barrier")
    k.stamp()
    first = True
    for t in range(9):
        skip = k.lab("skippv")
        if t < 8:
            k(f"s_cmp_gt_u32 s{sFirst}, {t}")
            k(f"s_cbranch_scc1 {skip}")
        s = S + 16*t
        vb = TMP + 4 + (t % 2)*8
        for st in range(2):
            k(f"ds_read_b64_tr_b16 v[{vb+4*st}:{vb+4*st+1}], {vV} offset:{t*2048 + st*1024}")
            if vV2: k(f"ds_read_b64_tr_b16 v[{vb+4*st+2}:{vb+4*st+3}], {vV2} offset:{t*2048 + st*1024}")
            else:   k(f"ds_read_b64_tr_b16 v[{vb+4*st+2}:{vb+4*st+3}], {vV} offset:{t*2048 + st*1024 + 512}")
        for r in range(16):
            k(f"v_fma_f32 v{s+r}, v{s+r}, s58, -v{mx}")
        for r in range(16):
            k(f"v_exp_f32 v{s+r}, v{s+r}")
        k("s_nop 0")
        for r in range(8):
            k(f"v_cvt_pk_bf16_f32 v{s+r}, v{s+2*r}, v{s+2*r+1}")
        k("s_waitcnt lgkmcnt(0)")
        k("s_nop 0")
        k(f"v_mfma_f32_32x32x16_bf16 v[{O}:{O+15}], v[{vb}:{vb+3}], v[{s}:{s+3}], v[{O}:{O+15}]")
        k(f"v_mfma_f32_32x32x16_bf16 v[{O}:{O+15}], v[{vb+4}:{vb+7}], v[{s+4}:{s+7}], v[{O}:{O+15}]")
        if t < 8:
            k(f"{skip}:")
    k("s_nop 15")

def attn_masks(k, MASK, vlane, vtmp):
    k(f"""
    v_and_b32 v{vtmp}, 31, v{vlane}
    v_lshrrev_b32 v{vtmp+1}, 5, v{vlane}
    v_lshlrev_b32 v{vtmp+1}, 2, v{vtmp+1}
    v_sub_u32 v{vtmp}, v{vtmp}, v{vtmp+1}
    """)
    for r in range(16):
        c = 8*(r >> 2) + (r & 3)
        k(f"v_cmp_le_i32 s[{MASK+2*r}:{MASK+2*r+1}], {c}, v{vtmp}")

def k_attn():
    k = K("attn")
    NWG = 256
    HB = 42*1024
    k(f"""
    s_cmp_ge_u32 s2, {NWG}
    s_cbranch_scc1 L_attn_end
    """)
    k.vprof = 60
    k.stamp()
    k.kptr(4, "ws")
    k("""
    v_lshrrev_b32 v1, 6, v0
    v_and_b32 v2, 63, v0
    v_lshlrev_b32 v3, 4, v2        ; lane*16
    v_readfirstlane_b32 s3, v1     ; wave 0..7
    """)
    wgmap_4x8(k, 30, 31)
    k("""
    s_and_b32 s32, s3, 3           ; w
    s_lshr_b32 s33, s3, 2          ; hd
    s_lshl_b32 s34, s31, 1
    s_add_u32 s34, s34, s33        ; head
    s_waitcnt lgkmcnt(0)
    """)
    k.wsrd(8, 4, "QF1"); k.wsrd(12, 4, "QF2"); k.wsrd(16, 4, "KF1"); k.wsrd(20, 4, "KF2"); k.wsrd(24, 4, "VR"); k.wsrd(40, 4, "O")
    Q1, Q2 = 8, 12
    k(f"""
    s_lshl_b32 s35, s30, 2
    s_add_u32 s36, s35, s32        ; qt = 4b + w
    s_lshl_b32 s37, s34, 6         ; head*64
    s_add_u32 s38, s37, s36
    s_lshl_b32 s39, s38, 10
    s_lshl_b32 s38, s38, 9
    v_lshlrev_b32 v6, 3, v2        ; lane*8
    buffer_load_dwordx4 v[{Q1}:{Q1+3}], v3, s[8:11], s39 offen
    buffer_load_dwordx2 v[{Q2}:{Q2+1}], v6, s[12:15], s38 offen
    s_mul_i32 s44, s33, {HB}
    s_sub_i32 s45, s35, 8
    """)
    for i in range(3):
        k(f"""
        s_mul_i32 s46, s32, 3
        s_add_u32 s46, s46, {i}
        s_add_i32 s47, s45, s46
        s_max_i32 s47, s47, 0
        s_add_u32 s47, s47, s37
        s_lshl_b32 s47, s47, 10
        s_lshl_b32 s46, s46, 10
        s_add_u32 m0, s44, s46
        s_nop 0
        buffer_load_dwordx4 v3, s[16:19], s47 offen lds
        """)
    lab = k.lab("nok2")
    k(f"s_cmp_ge_u32 s32, 3\ns_cbranch_scc1 {lab}")
    for i in range(2):
        k(f"""
        s_lshl_b32 s46, s32, 1
        s_add_u32 s46, s46, {i}
        s_lshl_b32 s48, s46, 1
        s_add_i32 s47, s45, s48
        s_max_i32 s47, s47, 0
        s_add_u32 s47, s47, s37
        s_lshl_b32 s47, s47, 9
        s_lshl_b32 s46, s46, 10
        s_add_u32 s46, s46, 12288
        s_add_u32 m0, s44, s46
        s_nop 0
        buffer_load_dwordx4 v3, s[20:23], s47 offen lds
        """)
    k(f"{lab}:")
    for i in range(6):
        k(f"""
        s_mul_i32 s46, s32, 6
        s_add_u32 s46, s46, {i}
        s_lshl_b32 s48, s45, 1
        s_add_i32 s47, s48, s46
        s_max_i32 s47, s47, 0
        s_lshl_b32 s47, s47, 10
        s_lshl_b32 s48, s34, 17
        s_add_u32 s47, s47, s48
        s_lshl_b32 s46, s46, 10
        s_add_u32 s46, s46, 18432
        s_add_u32 m0, s44, s46
        s_nop 0
        buffer_load_dwordx4 v3, s[24:27], s47 offen lds
        """)
    S, O, TMP = 64, 16, 32
    MASK = 64
    attn_masks(k, MASK, 2, 4)
    k(f"""
    s_lshl_b32 s46, s32, 10
    s_add_u32 s46, s46, s44
    v_add_u32 v14, s46, v3             ; K1 addr
    s_lshl_b32 s46, s32, 9
    s_add_u32 s46, s46, s44
    s_add_u32 s46, s46, 12288
    v_add_u32 v15, s46, v6             ; K2 addr
    ; V addr: ((l>>5)*4 + ((l&15)>>2))*64 + ((l>>4)&1)*32 + (l&3)*8
    v_lshrrev_b32 v4, 5, v2
    v_lshlrev_b32 v4, 2, v4
    v_and_b32 v5, 15, v2
    v_lshrrev_b32 v5, 2, v5
    v_add_u32 v4, v4, v5
    v_lshlrev_b32 v4, 6, v4
    v_lshrrev_b32 v5, 4, v2
    v_and_b32 v5, 1, v5
    v_lshlrev_b32 v5, 5, v5
    v_add_u32 v4, v4, v5
    v_and_b32 v5, 3, v2
    v_lshlrev_b32 v5, 3, v5
    v_add_u32 v4, v4, v5
    s_lshl_b32 s46, s32, 11
    s_add_u32 s46, s46, s44
    s_add_u32 s46, s46, 18432
    v_add_u32 v7, s46, v4              ; V addr
    s_sub_i32 s49, 8, s36
    s_max_i32 s49, s49, 0
    """)
    for r in range(16):
        k(f"v_mov_b32 v{O+r}, 0")
    k.stamp()
    k("s_waitcnt vmcnt(0)\ns_barrier")
    k.stamp()
    attn_core(k, S, Q1, Q2, O, TMP, "v14", "v15", "v7", 49, MASK)
    k.stamp()
    k(f"""
    v_lshrrev_b32 v4, 5, v2
    v_cmp_eq_u32 s[46:47], 0, v4
    s_nop 1
    v_cndmask_b32 v5, v{O+8}, v{O+12}, s[46:47]
    v_rcp_f32 v5, v5
    s_nop 0
    """)
    for r in range(12):
        k(f"v_mul_f32 v{O+r}, v{O+r}, v5")
    for r in range(6):
        k(f"v_cvt_pk_bf16_f32 v{TMP+r}, v{O+2*r}, v{O+2*r+1}")
    k(f"""
    v_and_b32 v8, 31, v2
    s_lshl_b32 s50, s36, 5
    v_add_u32 v8, s50, v8              ; token
    v_lshrrev_b32 v9, 4, v8            ; R16
    v_mul_u32_u24 v9, 20*1024, v9
    v_and_b32 v8, 15, v8
    v_lshlrev_b32 v8, 4, v8            ; (token&15)*16
    v_add_u32 v9, v9, v8
    ; p = 5g + 2hd + h
    s_mul_i32 s50, s31, 5
    s_lshl_b32 s51, s33, 1
    s_add_u32 s51, s51, s50
    v_add_u32 v10, s51, v4             ; p
    v_lshrrev_b32 v11, 2, v10          ; s32
    v_lshlrev_b32 v11, 10, v11
    v_and_b32 v10, 3, v10
    v_lshlrev_b32 v10, 8, v10          ; q*256
    v_add3_u32 v10, v9, v10, v11
    buffer_store_dwordx4 v[{TMP}:{TMP+3}], v10, s[40:43], 0 offen
    s_add_u32 s50, s50, 4
    s_lshr_b32 s51, s50, 2
    s_lshl_b32 s51, s51, 10
    s_and_b32 s50, s50, 3
    s_lshl_b32 s50, s50, 8
    s_add_u32 s50, s50, s51
    s_lshl_b32 s51, s33, 3
    s_add_u32 s50, s50, s51
    s_mov_b64 exec, s[46:47]
    buffer_store_dwordx2 v[{TMP+4}:{TMP+5}], v9, s[40:43], s50 offen
    """)
    k.stamps_out(3, 4, 3)
    k("""
    L_attn_end:
    s_endpgm
    """)
    return k.text(), NWG, 512, 2*HB, 224, 224

def gemm_b_main(k, KS, D, ACC, WF, sX, sXoff, sW, sWoff, sWave):
    H = KS//2
    NS = H//2
    SB = 20*1024
    per = 4 + 5
    assert D*SB <= 160*1024
    def lds_addr(slot, idx):
        off = slot*SB + idx*1024
        base = off // 65536
        return f"v{3+base}", off - base*65536
    k(f"""
    s_mul_i32 s62, s{sWave}, 5120
    s_lshr_b32 s63, s{sWave}, 1
    s_mul_i32 s63, s63, {H}
    s_and_b32 s60, s{sWave}, 1
    s_add_u32 s63, s63, s60
    s_mul_i32 s63, s63, 5120
    s_add_u32 s63, s63, s{sWoff}
    """)
    def issue(i):
        for tt in range(2):
            k(f"s_add_u32 s60, s{sXoff}, {tt*KS*1024 + i*2048}")
            for ss in range(2):
                a = (tt*H + i*2 + ss)*4
                k(f"buffer_load_dwordx4 a[{a}:{a+3}], v3, s[{sX}:{sX+3}], s60 offen offset:{ss*1024}")
        slot = i % D
        k(f"s_add_u32 s61, s63, {i*2*5120}")
        k(f"s_add_u32 m0, s62, {slot*SB}")
        k("s_nop 0")
        for q in range(4):
            k(f"buffer_load_dwordx4 v3, s[{sW}:{sW+3}], s61 offen offset:{q*1024} lds")
        k(f"s_add_u32 s61, s61, 4096")
        k(f"s_add_u32 m0, m0, 4096")
        k("s_nop 0")
        k(f"buffer_load_dwordx4 v3, s[{sW}:{sW+3}], s61 offen lds")
    n0 = min(D, NS)
    for i in range(n0):
        issue(i)
    issued = n0
    k(f"""
    s_lshr_b32 s60, s{sWave}, 1
    s_mul_i32 s60, s60, 10240
    v_add_u32 v6, s60, v3
    v_add_u32 v7, 0x10000, v6
    v_add_u32 v8, 0x20000, v6
    """)
    def reads(i, ss, buf):
        for T in range(5):
            off = (i % D)*SB + (ss*5+T)*1024
            base = off // 65536
            r = WF + buf*20 + T*4
            k(f"ds_read_b128 v[{r}:{r+3}], v{6+base} offset:{off - base*65536}")
    k.stamp()
    k(f"s_waitcnt vmcnt({(issued-1)*per})")
    k("s_barrier")
    k.stamp()
    reads(0, 0, 0)
    buf = 0
    for i in range(NS):
        if i in (NS//4, NS//2, 3*NS//4): k.stamp()
        for ss in range(2):
            last = (ss == 1)
            if not last:
                reads(i, ss+1, buf ^ 1)
                k(f"s_waitcnt lgkmcnt(5)")
            else:
                if i+1 < NS:
                    n_after = (issued - (i+2)) * per
                    k(f"s_waitcnt vmcnt({n_after}) lgkmcnt(0)")
                    k("s_barrier")
                    if issued < NS:
                        issue(issued); issued += 1
                    reads(i+1, 0, buf ^ 1)
                else:
                    k("s_waitcnt lgkmcnt(0)")
            for tt in range(2):
                a = (tt*H + i*2 + ss)*4
                for T in range(5):
                    r = WF + buf*20 + T*4
                    c = ACC + (tt*5+T)*4
                    cs = f"v[{c}:{c+3}]"
                    src = "0" if (i == 0 and ss == 0) else cs
                    k(f"v_mfma_f32_16x16x32_bf16 {cs}, v[{r}:{r+3}], a[{a}:{a+3}], {src}")
            buf ^= 1
    k("s_nop 7")

def gemm_b_exchange(k, ACC, TMP, sWave):
    k("s_barrier")
    l1 = k.lab("xk1"); l2 = k.lab("xdone")
    k(f"""
    s_mul_i32 s60, s{sWave}, 5120
    v_add_u32 v6, s60, v3
    s_xor_b32 s61, s{sWave}, 2
    s_mul_i32 s61, s61, 5120
    v_add_u32 v7, s61, v3
    s_lshr_b32 s61, s{sWave}, 1
    s_cmp_eq_u32 s61, 1
    s_cbranch_scc1 {l1}
    """)
    for T in range(5):
        c = ACC + (5+T)*4
        k(f"ds_write_b128 v6, v[{c}:{c+3}] offset:{T*1024}")
    k(f"s_branch {l2}")
    k(f"{l1}:")
    for T in range(5):
        c = ACC + T*4
        k(f"ds_write_b128 v6, v[{c}:{c+3}] offset:{T*1024}")
    k("s_nop 1")
    for r in range(20):
        k(f"v_mov_b32 v{ACC+r}, v{ACC+20+r}")
    k(f"{l2}:")
    k("s_waitcnt lgkmcnt(0)\ns_barrier")
    for T in range(5):
        k(f"ds_read_b128 v[{TMP+4*T}:{TMP+4*T+3}], v7 offset:{T*1024}")
    k("s_waitcnt lgkmcnt(0)")
    for r in range(20):
        k(f"v_add_f32 v{ACC+r}, v{ACC+r}, v{TMP+r}")

def wgmap_b(k, sTB, sJ):
    k(f"""
    s_and_b32 s50, s2, 7
    s_lshr_b32 s51, s2, 3
    s_lshl_b32 s{sTB}, s50, 2
    s_and_b32 s52, s51, 3
    s_add_u32 s{sTB}, s{sTB}, s52
    s_lshr_b32 s{sJ}, s51, 2
    """)

def k_resid_gemm(which):
    name = which
    k = K(name)
    NWG = 256
    KS = 20 if which == "wo" else 48
    D = 5
    ACC, WF, RES, GV = 64, 16, 104, 114
    k(f"""
    s_cmp_ge_u32 s2, {NWG}
    s_cbranch_scc1 L_{name}_end
    """)
    k.vprof = 134
    k.stamp()
    k.kptr(4, "ws")
    k.kptr(6, "x" if which == "wo" else "out")
    k("""
    v_lshrrev_b32 v1, 6, v0
    v_and_b32 v2, 63, v0
    v_lshlrev_b32 v3, 4, v2
    v_readfirstlane_b32 s3, v1     ; wave
    v_add_u32 v4, 0x10000, v3
    v_add_u32 v5, 0x20000, v3
    """)
    wgmap_b(k, 30, 31)
    k("s_waitcnt lgkmcnt(0)")
    k.wsrd(8, 4, "O" if which == "wo" else "HH")
    k.wsrd(12, 4, "WO" if which == "wo" else "WD")
    k.srd(16, 6, 2048*1280)
    k.wsrd(20, 4, "X1")
    k.wsrd(24, 4, "MOD")
    k.wsrd(40, 4, "STAT")
    k(f"""
    s_and_b32 s32, s3, 1           ; mi
    s_lshr_b32 s33, s3, 1          ; kj
    s_lshl_b32 s34, s30, 2
    s_lshl_b32 s35, s32, 1
    s_add_u32 s34, s34, s35
    s_mul_i32 s35, s34, {KS}
    s_mul_i32 s36, s33, {KS//2}
    s_add_u32 s35, s35, s36
    s_lshl_b32 s35, s35, 10        ; X offset
    s_mul_i32 s36, s31, {KS*5*1024}   ; W offset
    s_add_u32 s37, s34, s33
    v_and_b32 v9, 15, v2
    v_lshrrev_b32 v10, 4, v2
    s_lshl_b32 s38, s37, 4
    v_add_u32 v11, s38, v9         ; token
    s_mul_i32 s39, s31, 80
    v_lshlrev_b32 v12, 2, v10
    v_add_u32 v12, s39, v12        ; n0 = 80j + 4q
    v_mul_u32_u24 v13, 1280, v11
    v_lshlrev_b32 v14, 1, v12
    v_add_u32 v13, v13, v14
    v_lshrrev_b32 v14, 5, v11
    v_mul_u32_u24 v14, 40*1024, v14
    v_and_b32 v15, 31, v11
    v_lshrrev_b32 v56, 1, v10
    v_lshlrev_b32 v56, 5, v56
    v_add_u32 v15, v15, v56
    v_lshlrev_b32 v15, 4, v15
    v_add_u32 v14, v14, v15
    v_and_b32 v15, 1, v10
    v_lshlrev_b32 v15, 3, v15
    v_add_u32 v14, v14, v15
    s_mul_i32 s44, s31, 5*1024
    v_add_u32 v14, s44, v14
    v_lshlrev_b32 v15, 2, v12
    """)
    part = 2 if which == "wo" else 5
    for T in range(5):
        if which == "wo":
            k(f"buffer_load_dwordx2 v[{RES+2*T}:{RES+2*T+1}], v13, s[16:19], 0 offen offset:{T*32}")
        else:
            k(f"s_mov_b32 s45, {T*1024}")
            k(f"buffer_load_dwordx2 v[{RES+2*T}:{RES+2*T+1}], v14, s[20:23], s45 offen")
        k(f"s_mov_b32 s45, {part*2560}")
        k(f"buffer_load_dwordx4 v[{GV+4*T}:{GV+4*T+3}], v15, s[24:27], s45 offen offset:{T*64}")
    gemm_b_main(k, KS, D, ACC, WF, 8, 35, 12, 36, 3)
    k.stamp()
    gemm_b_exchange(k, ACC, 16, 3)
    k.stamp()
    k("s_waitcnt vmcnt(0)")
    for T in range(5):
        for r in range(4):
            e = ACC + 4*T + r
            src = RES + 2*T + r//2
            if r % 2 == 0:
                k(f"v_lshlrev_b32 v16, 16, v{src}")
            else:
                k(f"v_and_b32 v16, 0xffff0000, v{src}")
            k(f"v_fma_f32 v{e}, v{e}, v{GV+4*T+r}, v16")
    for T in range(5):
        for r in range(2):
            k(f"v_cvt_pk_bf16_f32 v{20+2*T+r}, v{ACC+4*T+2*r}, v{ACC+4*T+2*r+1}")
    if which == "wo":
        for T in range(5):
            k(f"s_mov_b32 s45, {T*1024}")
            k(f"buffer_store_dwordx2 v[{20+2*T}:{21+2*T}], v14, s[20:23], s45 offen")
        k("v_mov_b32 v16, 0\nv_mov_b32 v17, 0")
        for r in range(10):
            k(f"v_lshlrev_b32 v18, 16, v{20+r}")
            k(f"v_and_b32 v19, 0xffff0000, v{20+r}")
            k(f"v_add_f32 v16, v16, v18")
            k(f"v_fmac_f32 v17, v18, v18")
            k(f"v_add_f32 v16, v16, v19")
            k(f"v_fmac_f32 v17, v19, v19")
        for sw in ("v_permlane16_swap_b32", "v_permlane32_swap_b32"):
            k(f"""
            v_mov_b32 v18, v16
            v_mov_b32 v19, v17
            s_nop 1
            {sw} v16, v18
            {sw} v17, v19
            s_nop 1
            v_add_f32 v16, v16, v18
            v_add_f32 v17, v17, v19
            """)
        k("""
        v_lshlrev_b32 v18, 6, v11          ; token*64
        s_lshl_b32 s45, s31, 3
        v_cmp_gt_u32 vcc, 16, v2
        s_and_saveexec_b64 s[46:47], vcc
        buffer_store_dwordx2 v[16:17], v18, s[40:43], s45 offen
        """)
    else:
        for T in range(5):
            k(f"buffer_store_dwordx2 v[{20+2*T}:{21+2*T}], v13, s[16:19], 0 offen offset:{T*32}")
    k.stamps_out(4 if which == "wo" else 6, 4, 3)
    k(f"""
    L_{name}_end:
    s_endpgm
    """)
    nA = 2*(KS//2)*4
    return k.text(), NWG, 256, D*20*1024, 136+nA, 136

def wgmap_gu(k, sM, sN):
    k(f"""
    s_and_b32 s50, s2, 7
    s_lshr_b32 s51, s2, 3
    s_and_b32 s{sM}, s50, 1
    s_lshl_b32 s{sM}, s{sM}, 3
    s_and_b32 s52, s51, 7
    s_add_u32 s{sM}, s{sM}, s52
    s_lshr_b32 s{sN}, s50, 1
    s_lshl_b32 s{sN}, s{sN}, 2
    s_lshr_b32 s52, s51, 3
    s_add_u32 s{sN}, s{sN}, s52
    """)

def k_gu():
    k = K("gu")
    NWG = 256
    D = 5
    ACC, WF = 64, 16
    TAB = D*24*1024
    k(f"""
    s_cmp_ge_u32 s2, {NWG}
    s_cbranch_scc1 L_gu_end
    """)
    k.vprof = 176
    k.stamp()
    k.kptr(4, "ws")
    k("""
    v_lshrrev_b32 v1, 6, v0
    v_and_b32 v2, 63, v0
    v_lshlrev_b32 v3, 4, v2
    v_readfirstlane_b32 s3, v1     ; wave
    v_add_u32 v4, 0x10000, v3
    v_add_u32 v5, 0x20000, v3
    """)
    wgmap_gu(k, 30, 31)
    k("s_waitcnt lgkmcnt(0)")
    k.wsrd(8, 4, "X1"); k.wsrd(12, 4, "W2"); k.wsrd(16, 4, "CB2"); k.wsrd(20, 4, "STAT"); k.wsrd(24, 4, "HH")
    k(f"""
    s_lshl_b32 s32, s30, 2
    s_add_u32 s32, s32, s3         ; R32
    s_mul_i32 s33, s32, 40*1024    ; X offset
    s_mul_i32 s34, s31, 240*1024   ; W offset
    v_and_b32 v8, 31, v2
    s_lshl_b32 s35, s32, 5
    v_add_u32 v8, s35, v8          ; token
    v_lshlrev_b32 v9, 6, v8
    buffer_load_dwordx4 v[160:163], v9, s[20:23], 0 offen
    buffer_load_dwordx4 v[164:167], v9, s[20:23], 0 offen offset:16
    buffer_load_dwordx4 v[168:171], v9, s[20:23], 0 offen offset:32
    buffer_load_dwordx4 v[172:175], v9, s[20:23], 0 offen offset:48
    s_cmp_ge_u32 s3, 2
    s_cbranch_scc1 L_gu_notab
    s_lshl_b32 s36, s31, 11
    s_lshl_b32 s37, s3, 10
    s_add_u32 s36, s36, s37
    s_add_u32 m0, s37, {TAB}
    s_nop 0
    buffer_load_dwordx4 v3, s[16:19], s36 offen lds
    L_gu_notab:
    """)
    gemm_a_main(k, 6, D, ACC, WF, 8, 33, 12, 34, 3)
    k.stamp()
    k("""
    v_add_f32 v160, v160, v162
    v_add_f32 v161, v161, v163
    v_add_f32 v164, v164, v166
    v_add_f32 v165, v165, v167
    v_add_f32 v168, v168, v170
    v_add_f32 v169, v169, v171
    v_add_f32 v172, v172, v174
    v_add_f32 v173, v173, v175
    v_add_f32 v160, v160, v164
    v_add_f32 v161, v161, v165
    v_add_f32 v168, v168, v172
    v_add_f32 v169, v169, v173
    v_add_f32 v160, v160, v168
    v_add_f32 v161, v161, v169
    """)
    k(f"""
    v_mul_f32 v160, {fhex(1.0/640)}, v160       ; mu
    v_mul_f32 v161, {fhex(1.0/640)}, v161       ; E[x^2]
    v_fma_f32 v161, -v160, v160, v161           ; var
    v_max_f32 v161, 0, v161
    v_add_f32 v161, {fhex(1e-5)}, v161
    v_rsq_f32 v161, v161                        ; r
    v_lshrrev_b32 v7, 5, v2                     ; h
    v_lshlrev_b32 v6, 5, v7                     ; h*32
    v_add_u32 v6, {TAB}, v6
    v_lshrrev_b32 v9, 4, v8
    v_mul_u32_u24 v9, 48*1024, v9
    v_and_b32 v10, 15, v8
    v_lshlrev_b32 v10, 4, v10
    v_add_u32 v9, v9, v10
    v_lshlrev_b32 v10, 8, v7
    v_add_u32 v9, v9, v10
    s_mul_i32 s36, s31, 6                       ; T' base = 6j
    """)
    for T in range(6):
        acc = ACC + 16*T
        for a in range(4):
            k(f"ds_read_b128 v[{16+8*a}:{19+8*a}], v6 offset:{T*256 + a*64}")
            k(f"ds_read_b128 v[{20+8*a}:{23+8*a}], v6 offset:{T*256 + a*64 + 16}")
        k("s_waitcnt lgkmcnt(0)")
        for a in range(4):
            for r in range(4):
                e = acc + 4*a + r
                k(f"v_fma_f32 v{e}, -v160, v{16+8*a+r}, v{e}")
                k(f"v_fma_f32 v{e}, v{e}, v161, v{20+8*a+r}")
        for r in range(4):
            k(f"v_mul_f32 v{acc+r}, v{acc+r}, v{acc+4+r}")
            k(f"v_mul_f32 v{acc+8+r}, v{acc+8+r}, v{acc+12+r}")
        k(f"v_cvt_pk_bf16_f32 v48, v{acc}, v{acc+1}")
        k(f"v_cvt_pk_bf16_f32 v49, v{acc+2}, v{acc+3}")
        k(f"v_cvt_pk_bf16_f32 v50, v{acc+8}, v{acc+9}")
        k(f"v_cvt_pk_bf16_f32 v51, v{acc+10}, v{acc+11}")
        k(f"""
        s_add_u32 s37, s36, {T}
        s_lshr_b32 s38, s37, 1
        s_lshl_b32 s38, s38, 10
        s_and_b32 s37, s37, 1
        s_lshl_b32 s37, s37, 9
        s_add_u32 s38, s38, s37
        buffer_store_dwordx4 v[48:51], v9, s[24:27], s38 offen
        s_nop 1
        """)
    k.stamps_out(5, 4, 3)
    k("""
    L_gu_end:
    s_endpgm
    """)
    return k.text(), NWG, 256, TAB + 2048, 180+160, 180

def build(kernels):
    launches = []; body = ""; desc = ""
    for name, fn in kernels:
        text, nwg, blk, lds, nv, acc = fn()
        kn = name + "_kernel"
        launches.append((kn, nwg, blk, lds))
        body += kern_begin(kn) + text
        desc += kern_desc(kn, nv, acc)
    return header(launches) + body + '.section .rodata,"a"\n' + desc

V1 = [("mod", k_mod), ("prep", k_prep), ("qkv", k_qkv), ("attn", k_attn),
      ("wo", lambda: k_resid_gemm("wo")), ("gu", k_gu), ("down", lambda: k_resid_gemm("down"))]

if __name__ == "__main__":
    out = sys.argv[1] if len(sys.argv) > 1 else "cdna_kernels/" + NAME + ".s"
    if len(sys.argv) > 2 and sys.argv[2] == "prof": PROF = True
    open(out, "w").write(build(V1))
    print("written", out)
```

```python
import sys
import gen
from gen import K, WS, fhex, LOG2E
gen.STAGE_MAJOR = True

SPIN_LIMIT = 40000

class VM:
    def __init__(self, k):
        self.k = k; self.ops = []; self.done = -1
    def issue(self, tag, text):
        self.k(text); self.ops.append(tag)
    def note(self, tag, n=1):
        self.ops += [tag]*n
    def count_after(self, tag):
        idx = max(i for i, t in enumerate(self.ops) if t == tag)
        return idx, len(self.ops) - 1 - idx
    def need(self, tag):
        idx, n = self.count_after(tag)
        if idx <= self.done: return None
        self.done = idx
        return min(n, 63)
    def wait(self, tag, extra=""):
        n = self.need(tag)
        if n is None:
            if extra: self.k(f"s_waitcnt {extra}")
        else:
            self.k(f"s_waitcnt vmcnt({n}) {extra}")
    def drain(self):
        self.k("s_waitcnt vmcnt(0)"); self.done = len(self.ops) - 1

S_WS = 4
S_WAVE = 3
S_B, S_M = 30, 31
SRD_X, SRD_W, SRD_F = 8, 12, 16
SRD_A, SRD_B, SRD_C = 20, 24, 40
S_XOFF, S_WOFF = 33, 34

def lds_base_regs(k):
    k("v_add_u32 v4, 0x10000, v3\nv_add_u32 v5, 0x20000, v3")

def prefetch_part(k, vm, tag_fn, first, count, chunks_per_stage, srd, soff, ldsbase=0):
    if count == 0: return
    lab = k.lab("pf")
    k(f"""
    s_sub_u32 s60, s{S_WAVE}, 1
    s_lshl_b32 s60, s60, 10
    s_add_u32 s60, s60, {first*3072}
    s_add_u32 s61, s60, s{soff}
    s_add_u32 s60, s60, {ldsbase}
    s_mov_b32 s62, {count}
    {lab}:
    s_mov_b32 m0, s60
    s_add_u32 s60, s60, 3072
    buffer_load_dwordx4 v3, s[{srd}:{srd+3}], s61 offen lds
    s_add_u32 s61, s61, 3072
    s_sub_u32 s62, s62, 1
    s_cmp_lg_u32 s62, 0
    s_cbranch_scc1 {lab}
    """)
    for i in range(first, first+count):
        vm.note(tag_fn((3*i)//chunks_per_stage))

def signal_and_poll(k, mode, sig_off, sig_val_is_atomic, poll_off_reg_setup, target, nl):
    pass

def poll(k, nlanes, target):
    lab = k.lab("poll"); done = k.lab("polled")
    k(f"""
    s_mov_b64 exec, {(1 << nlanes) - 1}
    s_mov_b32 s63, {SPIN_LIMIT}
    {lab}:
    buffer_load_dword v14, v12, s[{SRD_F}:{SRD_F+3}], 0 offen sc1
    s_waitcnt vmcnt(0)
    v_cmp_le_u32 vcc, {target}, v14
    s_nop 1
    s_cmp_eq_u64 vcc, exec
    s_cbranch_scc1 {done}
    s_sub_u32 s63, s63, 1
    s_cmp_lg_u32 s63, 0
    s_cbranch_scc1 {lab}
    {done}:
    s_mov_b64 exec, -1
    """)

def team_counter_off(k, idx, sdst):
    k(f"s_lshl_b32 s{sdst}, s{S_B}, 7\ns_add_u32 s{sdst}, s{sdst}, {32768 + idx*2048}")

def handoff(k, vm, idx, pf, n1, n2):
    l0 = k.lab("w0"); lj = k.lab("join")
    k(f"s_cmp_eq_u32 s{S_WAVE}, 0\ns_cbranch_scc1 {l0}")
    n0 = len(vm.ops)
    pf(0, n1)
    k(f"s_waitcnt vmcnt({n1})")
    k("s_barrier")
    pf(n1, n2)
    k(f"s_branch {lj}")
    k(f"{l0}:")
    k("s_waitcnt vmcnt(0)")
    k("s_barrier")
    team_counter_off(k, idx, 60)
    k(f"""
    v_mov_b32 v12, s60
    v_mov_b32 v13, 1
    s_mov_b64 exec, 1
    buffer_atomic_add v13, v12, s[{SRD_F}:{SRD_F+3}], 0 offen sc1
    """)
    poll(k, 1, 16)
    k(f"{lj}:")
    k.stamp()
    k("s_barrier")
    vm.done = max(vm.done, n0 - 1)

def gemm_a(k, vm, NT, D, ACC, WF, xflags, prefetched, L=3, name="a", extra=()):
    NS, KS = 10, 4
    SB = KS*NT*1024
    def lds(slot, idx):
        off = slot*SB + idx*1024
        return f"v{3 + off//65536}", off % 65536
    def xload(n):
        s, ss = divmod(n, KS)
        return [(f"{name}x{n}", f"buffer_load_dwordx4 a[{4*n}:{4*n+3}], v3, s[{SRD_X}:{SRD_X+3}], s{35+ (s%2)} offen offset:{ss*1024} {xflags}",
                 f"s_add_u32 s{35+(s%2)}, s{S_XOFF}, {s*KS*1024}" if ss == 0 else None)]
    def wpieces(s):
        out = []
        slot = s % D
        for q in range(NT):
            pre = None
            if q == 0:
                pre = f"s_add_u32 s61, s{S_WOFF}, {s*SB}\ns_add_u32 s61, s61, s62\ns_add_u32 m0, s62, {slot*SB}\ns_nop 0"
            elif q == 4:
                pre = "s_add_u32 s61, s61, 4096\ns_add_u32 m0, m0, 4096\ns_nop 0"
            out.append((f"{name}w{s}", f"buffer_load_dwordx4 v3, s[{SRD_W}:{SRD_W+3}], s61 offen offset:{(q%4)*1024} lds", pre))
        return out
    def emit(op):
        tag, text, pre = op
        if pre: k(pre)
        vm.issue(tag, text)
    k(f"s_mul_i32 s62, s{S_WAVE}, {NT*1024}")
    sched = [[] for _ in range(NS*KS)]
    if not prefetched:
        for s in range(L):
            for n in range(s*KS, (s+1)*KS): emit(xload(n)[0])
            for op in wpieces(s): emit(op)
        for s in range(L, NS):
            w = wpieces(s)
            base = (s-L)*KS
            for ss in range(KS):
                sched[base+ss] += xload(s*KS+ss)
                lo = (len(w)*ss)//KS; hi = (len(w)*(ss+1))//KS
                sched[base+ss] += w[lo:hi]
    else:
        NX0 = 8
        for n in range(NX0): emit(xload(n)[0])
        n = NX0
        step = 0
        while n < NS*KS:
            for _ in range(2):
                if n < NS*KS: sched[step] += xload(n); n += 1
            step += 1
        for s in range(prefetched, NS):
            w = wpieces(s)
            if s < D: base = 2 + (s-prefetched)*KS
            else:     base = (s-D)*KS + 3
            base = max(base, 2 + (s-prefetched)*3)
            for i in range(4):
                lo = (len(w)*i)//4; hi = (len(w)*(i+1))//4
                sched[base+i] += w[lo:hi]
    for step, op in extra: sched[step].append(op)
    def read(n, T, buf):
        s, ss = divmod(n, KS)
        v, off = lds(s % D, ss*NT+T)
        r = WF + buf*NT*4 + T*4
        k(f"ds_read_b128 v[{r}:{r+3}], {v} offset:{off}")
    k.stamp()
    vm.wait(f"{name}w0")
    k("s_barrier")
    k.stamp()
    for T in range(NT): read(0, T, 0)
    buf = 0
    for n in range(NS*KS):
        s, ss = divmod(n, KS)
        if ss == 0 and s in (3, 6): k.stamp()
        nxt = n+1 < NS*KS
        if ss == KS-1 and nxt:
            vm.wait(f"{name}w{s+1}", "lgkmcnt(0)")
            k("s_barrier")
        else:
            k("s_waitcnt lgkmcnt(0)")
        vm.wait(f"{name}x{n}")
        ops = list(sched[n])
        rd = list(range(NT)) if nxt else []
        for T in range(NT):
            r = WF + buf*NT*4 + T*4
            c = f"v[{ACC+16*T}:{ACC+16*T+15}]"
            src = "0" if n == 0 else c
            k(f"v_mfma_f32_32x32x16_bf16 {c}, v[{r}:{r+3}], a[{4*n}:{4*n+3}], {src}")
            for _ in range(2):
                if rd: read(n+1, rd.pop(0), buf ^ 1)
            if not rd and ops and T >= 1:
                emit(ops.pop(0))
        while ops: emit(ops.pop(0))
        buf ^= 1

def gemm_b(k, vm, KS, D, ACC, WF, name, P):
    H = KS//2; NS = H//2; SB = 20*1024
    def xload(i, tt, ss):
        a = (tt*H + i*2 + ss)*4
        pre = f"s_add_u32 s{35+tt}, s{S_XOFF}, {tt*KS*1024 + i*2048}" if ss == 0 else None
        return (f"{name}x{i}_{ss}", f"buffer_load_dwordx4 a[{a}:{a+3}], v3, s[{SRD_X}:{SRD_X+3}], s{35+tt} offen offset:{ss*1024} sc1", pre)
    def xstage(i):
        return [xload(i, 0, 0), xload(i, 1, 0), xload(i, 0, 1), xload(i, 1, 1)]
    def wpieces(s):
        out = []
        slot = s % D
        for q in range(5):
            pre = None
            if q == 0:
                pre = f"s_add_u32 s61, s{S_WOFF}, {s*SB}\ns_add_u32 s61, s61, s62\ns_add_u32 m0, s62, {slot*SB}\ns_nop 0"
            elif q == 4:
                pre = "s_add_u32 s61, s61, 4096\ns_add_u32 m0, m0, 4096\ns_nop 0"
            out.append((f"{name}w{s}", f"buffer_load_dwordx4 v3, s[{SRD_W}:{SRD_W+3}], s61 offen offset:{(q%4)*1024} lds", pre))
        return out
    def emit(op):
        tag, text, pre = op
        if pre: k(pre)
        vm.issue(tag, text)
    k(f"""
    s_mul_i32 s62, s{S_WAVE}, 5120
    s_lshr_b32 s60, s{S_WAVE}, 1
    s_mul_i32 s60, s60, 10240
    v_add_u32 v6, s60, v3
    v_add_u32 v7, 0x10000, v6
    v_add_u32 v8, 0x20000, v6
    """)
    nsteps = NS*2
    sched = [[] for _ in range(nsteps)]
    NX0 = min(NS, 3)
    for i in range(NX0):
        for op in xstage(i): emit(op)
    for i in range(NX0, NS):
        xs = xstage(i)
        base = (i-NX0)*2
        sched[base] += xs[:2] ; sched[base+1] += xs[2:]
    for s in range(P, NS):
        w = wpieces(s)
        base = (s-P)*2 if s < D else (s-D)*2 + 1
        base = max(base, (s-P)*2)
        sched[base] += w[:3]; sched[base+1] += w[3:]
    def read(n, T, buf):
        i, ss = divmod(n, 2)
        off = (i % D)*SB + (ss*5+T)*1024
        r = WF + buf*20 + T*4
        k(f"ds_read_b128 v[{r}:{r+3}], v{6 + off//65536} offset:{off % 65536}")
    k.stamp()
    vm.wait(f"{name}w0")
    k("s_barrier")
    for T in range(5): read(0, T, 0)
    buf = 0
    for n in range(nsteps):
        i, ss = divmod(n, 2)
        if ss == 0 and NS > 6 and i in (4, 8): k.stamp()
        nxt = n+1 < nsteps
        if ss == 1 and nxt:
            vm.wait(f"{name}w{i+1}", "lgkmcnt(0)")
            k("s_barrier")
        else:
            k("s_waitcnt lgkmcnt(0)")
        vm.wait(f"{name}x{i}_{ss}")
        ops = list(sched[n])
        rd = list(range(5)) if nxt else []
        cnt = 0
        for tt in range(2):
            a = (tt*H + i*2 + ss)*4
            for T in range(5):
                r = WF + buf*20 + T*4
                c = ACC + (tt*5+T)*4
                cs = f"v[{c}:{c+3}]"
                src = "0" if n == 0 else cs
                k(f"v_mfma_f32_16x16x32_bf16 {cs}, v[{r}:{r+3}], a[{a}:{a+3}], {src}")
                if rd: read(n+1, rd.pop(0), buf ^ 1)
                elif ops and cnt % 2 == 1: emit(ops.pop(0))
                cnt += 1
        while ops: emit(ops.pop(0))
        buf ^= 1
    k("s_nop 7")

def attention(k, S, Q, O, TMP, sFirst, MASK, HB):
    NEG = fhex(-1e30)
    C = LOG2E * 20 ** -0.5
    k(f"s_mov_b32 s58, {fhex(C)}")
    KB = TMP
    MX = TMP + 12
    NG = TMP + 16
    VB = TMP + 18
    PB = TMP + 34
    k(f"v_mov_b32 v{NG}, {NEG}")
    for r in range(32): k(f"v_mov_b32 v{O+r}, 0")
    def qk_reads(hd, t):
        b = KB + (t % 2)*6
        k(f"ds_read_b128 v[{b}:{b+3}], v14 offset:{hd*HB + t*1024}")
        k(f"ds_read_b64 v[{b+4}:{b+5}], v15 offset:{hd*HB + t*512}")
    def qk_mfma(hd, t):
        b = KB + (t % 2)*6
        s = S + 16*t; q = Q + 6*hd
        k(f"v_mfma_f32_32x32x16_bf16 v[{s}:{s+15}], v[{b}:{b+3}], v[{q}:{q+3}], 0")
        k(f"v_mfma_f32_32x32x8_bf16 v[{s}:{s+15}], v[{b+4}:{b+5}], v[{q+4}:{q+5}], v[{s}:{s+15}]")
    def fill_neg(t):
        for r in range(16): k(f"v_mov_b32 v{S+16*t+r}, v{NG}")
    def guarded(t, body, other=None):
        if t == 8:
            body(); return
        skip = k.lab("sk"); done = k.lab("dn")
        k(f"s_cmp_gt_u32 s{sFirst}, {t}\ns_cbranch_scc1 {skip}")
        body()
        if other:
            k(f"s_branch {done}\n{skip}:")
            other()
            k(f"{done}:")
        else:
            k(f"{skip}:")
    def mask_tile(t):
        for r in range(16):
            m = f"s[{MASK+2*r}:{MASK+2*r+1}]"
            if t == 8: k(f"v_cndmask_b32 v{S+128+r}, v{NG}, v{S+128+r}, {m}")
            else:      k(f"v_cndmask_b32 v{S+r}, v{S+r}, v{NG}, {m}")
    def max_tile(hd, t, first):
        s = S + 16*t; m = MX + 2*hd
        if first:
            k(f"v_max3_f32 v{m}, v{s}, v{s+1}, v{s+2}")
            k(f"v_max3_f32 v{m+1}, v{s+3}, v{s+4}, v{s+5}")
            k(f"v_max3_f32 v{m}, v{m}, v{s+6}, v{s+7}")
            k(f"v_max_f32 v{m+1}, v{m+1}, v{s+8}")
            e = 9
            k(f"v_max3_f32 v{m}, v{m}, v{s+9}, v{s+10}")
            k(f"v_max3_f32 v{m+1}, v{m+1}, v{s+11}, v{s+12}")
            k(f"v_max3_f32 v{m}, v{m}, v{s+13}, v{s+14}")
            k(f"v_max_f32 v{m+1}, v{m+1}, v{s+15}")
        else:
            for e in range(0, 16, 4):
                k(f"v_max3_f32 v{m}, v{m}, v{s+e}, v{s+e+1}")
                k(f"v_max3_f32 v{m+1}, v{m+1}, v{s+e+2}, v{s+e+3}")
    def finish_max(hd):
        m = MX + 2*hd
        k(f"""
        v_max_f32 v{m}, v{m}, v{m+1}
        v_mov_b32 v{m+1}, v{m}
        s_nop 1
        v_permlane32_swap_b32 v{m}, v{m+1}
        s_nop 1
        v_max_f32 v{m}, v{m}, v{m+1}
        v_mul_f32 v{m}, s58, v{m}
        """)
    def v_reads(hd, t):
        vb = VB + (t % 2)*8
        for st in range(2):
            k(f"ds_read_b64_tr_b16 v[{vb+4*st}:{vb+4*st+1}], v7 offset:{hd*HB + t*2048 + st*1024}")
            k(f"ds_read_b64_tr_b16 v[{vb+4*st+2}:{vb+4*st+3}], v7 offset:{hd*HB + t*2048 + st*1024 + 512}")
    order = list(range(9))
    guarded(0, lambda: qk_reads(0, 0))
    for t in order:
        def body(t=t):
            k("s_waitcnt lgkmcnt(0)")
            qk_mfma(0, t)
        if t+1 < 9:
            pass
        guarded(t, body, lambda t=t: fill_neg(t))
        if t+1 < 9: guarded(t+1, lambda t=t: qk_reads(0, t+1))
    k("s_nop 15")
    k.stamp()
    mask_tile(8); mask_tile(0)
    for t in range(9): max_tile(0, t, t == 0)
    finish_max(0)
    k.stamp()
    for hd in range(2):
        m = MX + 2*hd; o = O + 16*hd
        guarded(0, lambda: v_reads(hd, 0))
        if hd == 0: guarded(0, lambda: qk_reads(1, 0))
        for t in range(9):
            s = S + 16*t; vb = VB + (t % 2)*8
            def body(t=t, s=s, vb=vb):
                for r in range(16): k(f"v_fma_f32 v{s+r}, v{s+r}, s58, -v{m}")
                for r in range(16): k(f"v_exp_f32 v{s+r}, v{s+r}")
                if t+1 < 9: k("s_waitcnt lgkmcnt(0)"); v_next(t+1)
                else: k("s_waitcnt lgkmcnt(0)")
                for r in range(8): k(f"v_cvt_pk_bf16_f32 v{PB+r}, v{s+2*r}, v{s+2*r+1}")
                k("s_nop 1")
                k(f"v_mfma_f32_32x32x16_bf16 v[{o}:{o+15}], v[{vb}:{vb+3}], v[{PB}:{PB+3}], v[{o}:{o+15}]")
                k(f"v_mfma_f32_32x32x16_bf16 v[{o}:{o+15}], v[{vb+4}:{vb+7}], v[{PB+4}:{PB+7}], v[{o}:{o+15}]")
                if hd == 0:
                    qk_mfma(1, t)
            def v_next(t1, hd=hd):
                v_reads(hd, t1)
                if hd == 0: qk_reads(1, t1)
            def other(t=t):
                if hd == 0: fill_neg(t)
                if t+1 < 9:
                    guarded(t+1, lambda: (v_reads(hd, t+1), qk_reads(1, t+1) if hd == 0 else None))
            guarded(t, body, other if t < 8 else None)
        if hd == 0:
            k("s_nop 15")
            mask_tile(8); mask_tile(0)
            for t in range(9): max_tile(1, t, t == 0)
            finish_max(1)
            k.stamp()
    k("s_nop 15")

def k_p():
    k = K("p")
    vm = VM(k)
    NWG = 256
    k(f"s_cmp_ge_u32 s2, {NWG}\ns_cbranch_scc1 L_p_end")
    k.vprof = 255
    k.stamp()
    k.kptr(S_WS, "ws"); k.kptr(6, "x"); k.kptr(96, "out")
    k("""
    v_lshrrev_b32 v1, 6, v0
    v_and_b32 v2, 63, v0
    v_lshlrev_b32 v3, 4, v2
    v_readfirstlane_b32 s3, v1     ; wave
    """)
    lds_base_regs(k)
    gen.wgmap_4x8(k, S_B, S_M)
    k("s_waitcnt lgkmcnt(0)")
    k.wsrd(SRD_F, S_WS, "FLAGS")
    ACC, WF = 64, 16
    k.wsrd(SRD_X, S_WS, "H1"); k.wsrd(SRD_W, S_WS, "W1")
    k(f"""
    s_lshl_b32 s32, s{S_B}, 2
    s_add_u32 s32, s32, s3         ; R32
    s_mul_i32 s{S_XOFF}, s32, 40*1024
    s_mul_i32 s{S_WOFF}, s{S_M}, 160*1024
    """)
    gemm_a(k, vm, 4, 8, ACC, WF, "", False, L=3, name="q")
    k.stamp()
    HB = 42*1024
    Q = 240
    k.wsrd(SRD_A, S_WS, "KF1"); k.wsrd(SRD_B, S_WS, "KF2"); k.wsrd(SRD_C, S_WS, "VR")
    k(f"""
    s_barrier
    v_lshlrev_b32 v6, 3, v2        ; lane*8
    v_lshrrev_b32 v7, 5, v2        ; h
    v_and_b32 v8, 31, v2
    v_cmp_eq_u32 s[46:47], 0, v7   ; h==0 lanes
    s_add_u32 s44, s3, 8
    s_lshl_b32 s45, s44, 10
    v_add_u32 v9, s45, v3          ; K1 slot
    s_lshl_b32 s45, s44, 9
    s_add_u32 s45, s45, 12288
    v_add_u32 v10, s45, v6         ; K2 slot
    s_lshl_b32 s45, s44, 11
    s_add_u32 s45, s45, 18432
    v_lshlrev_b32 v11, 6, v8
    v_add_u32 v11, s45, v11        ; V row
    v_mov_b32 v12, 40
    v_cndmask_b32 v12, 0, v12, s[46:47]
    v_add_u32 v12, v11, v12        ; V row + (h0: 40, h1: 0)
    v_lshlrev_b32 v13, 3, v7
    v_add_u32 v13, v11, v13        ; V row + h*8
    v_mov_b32 v36, 0x3f80
    v_mov_b32 v37, 0
    v_cndmask_b32 v38, 0, v36, s[46:47]
    v_mov_b32 v39, 0
    s_nop 7
    """)
    for hd in range(2):
        t0 = ACC + 32*hd; t1 = t0 + 16
        P = 16; q = Q + 6*hd
        for r in range(4): k(f"v_cvt_pk_bf16_f32 v{q+r}, v{t0+2*r}, v{t0+2*r+1}")
        for r in range(2): k(f"v_cvt_pk_bf16_f32 v{q+4+r}, v{t0+8+2*r}, v{t0+9+2*r}")
        for r in range(2): k(f"v_cvt_pk_bf16_f32 v{P+r}, v{t0+12+2*r}, v{t0+13+2*r}")
        for r in range(2): k(f"v_cvt_pk_bf16_f32 v{P+2+r}, v{t1+2*r}, v{t1+2*r+1}")
        for r in range(6): k(f"v_cvt_pk_bf16_f32 v{P+4+r}, v{t1+4+2*r}, v{t1+5+2*r}")
        k(f"""
        s_lshl_b32 s45, s{S_M}, 1
        s_add_u32 s45, s45, {hd}        ; head
        s_lshl_b32 s48, s45, 6
        s_add_u32 s48, s48, s32         ; head*64 + R32
        s_lshl_b32 s49, s48, 10
        s_lshl_b32 s53, s48, 9
        """)
        vm.issue("kv", f"buffer_store_dwordx4 v[{P}:{P+3}], v3, s[{SRD_A}:{SRD_A+3}], s49 offen sc1")
        vm.issue("kv", f"buffer_store_dwordx2 v[{P+4}:{P+5}], v6, s[{SRD_B}:{SRD_B+3}], s53 offen sc1")
        k(f"""
        ds_write_b128 v9, v[{P}:{P+3}] offset:{hd*HB}
        ds_write_b64 v10, v[{P+4}:{P+5}] offset:{hd*HB}
        v_cndmask_b32 v{P+10}, v{P+4}, v36, s[46:47]
        v_cndmask_b32 v{P+11}, v{P+5}, v37, s[46:47]
        ds_write_b64 v12, v[{P+10}:{P+11}] offset:{hd*HB}
        ds_write_b64 v13, v[{P+6}:{P+7}] offset:{hd*HB + 8}
        ds_write_b64 v13, v[{P+8}:{P+9}] offset:{hd*HB + 24}
        ds_write_b64 v13, v[38:39] offset:{hd*HB + 48}
        s_nop 1
        """)
    k(f"""
    s_lshl_b32 s45, s44, 11
    s_add_u32 s45, s45, 18432
    v_add_u32 v9, s45, v3
    s_waitcnt lgkmcnt(0)
    """)
    for hd in range(2):
        for i in range(2):
            k(f"ds_read_b128 v[{16+8*hd+4*i}:{19+8*hd+4*i}], v9 offset:{hd*HB + i*1024}")
    k("s_waitcnt lgkmcnt(0)")
    for hd in range(2):
        k(f"""
        s_lshl_b32 s45, s{S_M}, 1
        s_add_u32 s45, s45, {hd}
        s_lshl_b32 s45, s45, 17
        s_lshl_b32 s48, s32, 11
        s_add_u32 s45, s45, s48
        """)
        for i in range(2):
            vm.issue("kv", f"buffer_store_dwordx4 v[{16+8*hd+4*i}:{19+8*hd+4*i}], v3, s[{SRD_C}:{SRD_C+3}], s45 offen offset:{i*1024} sc1")
    vm.drain()
    k("s_barrier")
    k.stamp()
    l0 = k.lab("kvw"); nop_ = k.lab("nopoll")
    k(f"""
    s_cmp_lg_u32 s3, 0
    s_cbranch_scc1 {l0}
    s_lshl_b32 s60, s{S_B}, 4
    s_add_u32 s60, s60, s{S_M}
    s_lshl_b32 s60, s60, 7              ; flag (b, g)
    v_mov_b32 v12, s60
    v_mov_b32 v13, 1
    s_mov_b64 exec, 1
    buffer_store_dword v13, v12, s[{SRD_F}:{SRD_F+3}], 0 offen sc1
    s_mov_b64 exec, -1
    s_cmp_eq_u32 s{S_B}, 0
    s_cbranch_scc1 {l0}
    s_sub_u32 s61, s60, 2048
    s_sub_u32 s62, s61, 2048
    s_cmp_eq_u32 s{S_B}, 1
    s_cselect_b32 s62, s61, s62
    v_mov_b32 v12, s62
    v_writelane_b32 v12, s61, 0
    """)
    poll(k, 2, 1)
    k(f"{l0}:")
    k("s_barrier")
    k.stamp()
    lskip = k.lab("nonb")
    k(f"""
    s_lshl_b32 s45, s{S_B}, 2
    s_sub_i32 s45, s45, 8               ; kt0
    s_lshl_b32 s46, s3, 1
    s_add_i32 s47, s45, s46
    s_cmp_lt_i32 s47, 0
    s_cbranch_scc1 {lskip}
    """)
    for hd in range(2):
        k(f"""
        s_lshl_b32 s48, s{S_M}, 1
        s_add_u32 s48, s48, {hd}        ; head
        s_lshl_b32 s49, s48, 6
        s_add_u32 s49, s49, s47
        s_lshl_b32 s50, s49, 10
        s_lshl_b32 s51, s49, 9
        s_lshl_b32 s52, s48, 17
        s_lshl_b32 s53, s47, 11
        s_add_u32 s52, s52, s53
        """)
        b = 64 + 28*hd
        k(f"buffer_load_dwordx4 v[{b}:{b+3}], v3, s[{SRD_A}:{SRD_A+3}], s50 offen sc1")
        k(f"buffer_load_dwordx4 v[{b+4}:{b+7}], v3, s[{SRD_A}:{SRD_A+3}], s50 offen offset:1024 sc1")
        k(f"buffer_load_dwordx4 v[{b+8}:{b+11}], v3, s[{SRD_B}:{SRD_B+3}], s51 offen sc1")
        for i in range(4):
            k(f"buffer_load_dwordx4 v[{b+12+4*i}:{b+15+4*i}], v3, s[{SRD_C}:{SRD_C+3}], s52 offen offset:{i*1024} sc1")
    k(f"""
    s_lshl_b32 s48, s46, 10
    v_add_u32 v9, s48, v3
    s_lshl_b32 s48, s46, 9
    s_add_u32 s48, s48, 12288
    v_add_u32 v10, s48, v3
    s_lshl_b32 s48, s46, 11
    s_add_u32 s48, s48, 18432
    v_add_u32 v11, s48, v3
    """)
    for hd in range(2):
        b = 64 + 28*hd
        k(f"s_waitcnt vmcnt({7*(1-hd)})")
        k(f"ds_write_b128 v9, v[{b}:{b+3}] offset:{hd*HB}")
        k(f"ds_write_b128 v9, v[{b+4}:{b+7}] offset:{hd*HB + 1024}")
        k(f"ds_write_b128 v10, v[{b+8}:{b+11}] offset:{hd*HB}")
        for i in range(4):
            k(f"ds_write_b128 v11, v[{b+12+4*i}:{b+15+4*i}] offset:{hd*HB + i*1024}")
    k(f"{lskip}:")
    S, O, TMP, MASK = 64, 208, 16, 64
    gen.attn_masks(k, MASK, 2, 9)
    k(f"""
    s_lshl_b32 s46, s3, 10
    v_add_u32 v14, s46, v3
    s_lshl_b32 s46, s3, 9
    s_add_u32 s46, s46, 12288
    v_add_u32 v15, s46, v6             ; K2 addr
    v_lshrrev_b32 v9, 5, v2
    v_lshlrev_b32 v9, 2, v9
    v_and_b32 v10, 15, v2
    v_lshrrev_b32 v10, 2, v10
    v_add_u32 v9, v9, v10
    v_lshlrev_b32 v9, 6, v9
    v_lshrrev_b32 v10, 4, v2
    v_and_b32 v10, 1, v10
    v_lshlrev_b32 v10, 5, v10
    v_add_u32 v9, v9, v10
    v_and_b32 v10, 3, v2
    v_lshlrev_b32 v10, 3, v10
    v_add_u32 v9, v9, v10
    s_lshl_b32 s46, s3, 11
    s_add_u32 s46, s46, 18432
    v_add_u32 v7, s46, v9              ; V addr
    s_sub_i32 s49, 8, s32
    s_max_i32 s49, s49, 0
    s_waitcnt lgkmcnt(0)
    s_barrier
    """)
    k.stamp()
    attention(k, S, Q, O, TMP, 49, MASK, HB)
    k.stamp()
    k.wsrd(SRD_A, S_WS, "O")
    k(f"""
    v_lshrrev_b32 v9, 5, v2            ; h
    v_cmp_eq_u32 s[46:47], 0, v9
    v_and_b32 v10, 31, v2
    s_lshl_b32 s50, s32, 5
    v_add_u32 v10, s50, v10            ; token
    v_lshrrev_b32 v11, 4, v10          ; R16
    v_mul_u32_u24 v11, 20*1024, v11
    v_and_b32 v10, 15, v10
    v_lshlrev_b32 v10, 4, v10
    v_add_u32 v11, v11, v10            ; R16*20K + (token&15)*16
    s_mul_i32 s50, s{S_M}, 5           ; 5g
    """)
    for hd in range(2):
        o = O + 16*hd
        k(f"v_cndmask_b32 v12, v{o+8}, v{o+12}, s[46:47]\nv_rcp_f32 v12, v12\ns_nop 0")
        for r in range(12): k(f"v_mul_f32 v{o+r}, v{o+r}, v12")
        for r in range(6): k(f"v_cvt_pk_bf16_f32 v{16+8*hd+r}, v{o+2*r}, v{o+2*r+1}")
        k(f"""
        s_add_u32 s51, s50, {2*hd}
        v_add_u32 v12, s51, v9             ; p = 5g + 2hd + h
        v_lshrrev_b32 v13, 2, v12
        v_lshlrev_b32 v13, 10, v13
        v_and_b32 v12, 3, v12
        v_lshlrev_b32 v12, 8, v12
        v_add3_u32 v12, v11, v12, v13
        """)
        vm.issue("o", f"buffer_store_dwordx4 v[{16+8*hd}:{19+8*hd}], v12, s[{SRD_A}:{SRD_A+3}], 0 offen sc1")
    k(f"""
    v_mov_b32 v22, v28
    v_mov_b32 v23, v29
    s_add_u32 s50, s50, 4
    s_lshr_b32 s51, s50, 2
    s_lshl_b32 s51, s51, 10
    s_and_b32 s50, s50, 3
    s_lshl_b32 s50, s50, 8
    s_add_u32 s50, s50, s51
    s_mov_b64 exec, s[46:47]
    """)
    vm.issue("o", f"buffer_store_dwordx4 v[20:23], v11, s[{SRD_A}:{SRD_A+3}], s50 offen sc1")
    k("s_mov_b64 exec, -1")
    k.stamp()
    k.wsrd(SRD_W, S_WS, "WO")
    k(f"""
    s_lshr_b32 s37, s{S_M}, 3
    s_lshl_b32 s38, s{S_B}, 1
    s_add_u32 s37, s37, s38            ; tb
    s_and_b32 s38, s{S_M}, 7           ; j
    s_mul_i32 s{S_WOFF}, s38, 100*1024
    s_barrier
    """)
    k.stamp()
    handoff(k, vm, 0, "o", lambda: prefetch_linear(k, vm, lambda s: f"ow{min(s,4)}", 102, 20, SRD_W, S_WOFF))
    ACC, WF, RES, GV = 64, 16, 104, 114
    k.wsrd(SRD_X, S_WS, "O")
    k.srd(SRD_A, 6, 2048*1280)
    k.wsrd(SRD_B, S_WS, "MOD")
    def b_geometry(KS):
        k(f"""
        s_and_b32 s52, s3, 1           ; mi
        s_lshr_b32 s53, s3, 1          ; kj
        s_lshl_b32 s54, s37, 2
        s_lshl_b32 s55, s52, 1
        s_add_u32 s54, s54, s55
        s_mul_i32 s55, s54, {KS}
        s_mul_i32 s56, s53, {KS//2}
        s_add_u32 s55, s55, s56
        s_lshl_b32 s{S_XOFF}, s55, 10
        s_add_u32 s57, s54, s53        ; final R16
        """)
    b_geometry(20)
    k(f"""
    v_and_b32 v9, 15, v2
    v_lshrrev_b32 v10, 4, v2           ; q
    s_lshl_b32 s59, s57, 4
    v_add_u32 v11, s59, v9
    s_mul_i32 s59, s38, 80
    v_lshlrev_b32 v12, 2, v10
    v_add_u32 v12, s59, v12            ; n0 = 80j + 4q
    v_mul_u32_u24 v13, 1280, v11
    v_lshlrev_b32 v14, 1, v12
    v_add_u32 v246, v13, v14
    v_lshlrev_b32 v247, 2, v12
    v_lshrrev_b32 v14, 5, v11
    v_mul_u32_u24 v14, 40*1024, v14
    v_and_b32 v15, 31, v11
    v_lshrrev_b32 v56, 1, v10
    v_lshlrev_b32 v56, 5, v56
    v_add_u32 v15, v15, v56
    v_lshlrev_b32 v15, 4, v15
    v_add_u32 v14, v14, v15
    v_and_b32 v15, 1, v10
    v_lshlrev_b32 v15, 3, v15
    v_add_u32 v14, v14, v15
    s_mul_i32 s59, s38, 5*1024
    v_add_u32 v14, s59, v14
    """)
    for T in range(5):
        vm.issue("res", f"buffer_load_dwordx2 v[{RES+2*T}:{RES+2*T+1}], v246, s[{SRD_A}:{SRD_A+3}], 0 offen offset:{T*32}")
        k(f"s_mov_b32 s59, {2*2560}")
        vm.issue("res", f"buffer_load_dwordx4 v[{GV+4*T}:{GV+4*T+3}], v247, s[{SRD_B}:{SRD_B+3}], s59 offen offset:{T*64}")
    gemm_b(k, vm, 20, 5, ACC, WF, "o")
    k.stamp()
    gen.gemm_b_exchange(k, ACC, 16, S_WAVE)
    k.stamp()
    vm.wait("res")
    k.stamp()
    X1R = 236
    for T in range(5):
        for r in range(4):
            e = ACC + 4*T + r; src = RES + 2*T + r//2
            k(f"v_lshlrev_b32 v16, 16, v{src}" if r % 2 == 0 else f"v_and_b32 v16, 0xffff0000, v{src}")
            k(f"v_fma_f32 v{e}, v{e}, v{GV+4*T+r}, v16")
    for T in range(5):
        for r in range(2):
            k(f"v_cvt_pk_bf16_f32 v{X1R+2*T+r}, v{ACC+4*T+2*r}, v{ACC+4*T+2*r+1}")
    k.wsrd(SRD_A, S_WS, "X1"); k.wsrd(SRD_C, S_WS, "STAT")
    for T in range(5):
        k(f"s_mov_b32 s59, {T*1024}")
        vm.issue("x1", f"buffer_store_dwordx2 v[{X1R+2*T}:{X1R+2*T+1}], v14, s[{SRD_A}:{SRD_A+3}], s59 offen sc1")
    k.stamp()
    k("v_mov_b32 v16, 0\nv_mov_b32 v17, 0")
    for r in range(10):
        k(f"""v_lshlrev_b32 v18, 16, v{X1R+r}
        v_and_b32 v19, 0xffff0000, v{X1R+r}
        v_add_f32 v16, v16, v18
        v_fmac_f32 v17, v18, v18
        v_add_f32 v16, v16, v19
        v_fmac_f32 v17, v19, v19""")
    for sw in ("v_permlane16_swap_b32", "v_permlane32_swap_b32"):
        k(f"""
        v_mov_b32 v18, v16
        v_mov_b32 v19, v17
        s_nop 1
        {sw} v16, v18
        {sw} v17, v19
        s_nop 1
        v_add_f32 v16, v16, v18
        v_add_f32 v17, v17, v19
        """)
    k(f"""
    v_lshlrev_b32 v18, 6, v11          ; token*64
    s_lshl_b32 s59, s38, 3
    s_mov_b64 exec, 0xffff
    """)
    vm.issue("x1", f"buffer_store_dwordx2 v[16:17], v18, s[{SRD_C}:{SRD_C+3}], s59 offen sc1")
    k("s_mov_b64 exec, -1")
    D2 = 6
    TAB = D2*24*1024
    k.wsrd(SRD_W, S_WS, "W2")
    k(f"s_mul_i32 s{S_WOFF}, s{S_M}, 240*1024")
    k("s_barrier")
    k.stamp()
    handoff(k, vm, 1, "x1", lambda: prefetch_linear(k, vm, lambda s: f"gw{s}", D2*24, 24, SRD_W, S_WOFF))
    ACC, WF = 64, 16
    k.wsrd(SRD_X, S_WS, "X1"); k.wsrd(SRD_A, S_WS, "CB2"); k.wsrd(SRD_B, S_WS, "STAT"); k.wsrd(SRD_C, S_WS, "HH")
    k(f"""
    s_mul_i32 s{S_XOFF}, s32, 40*1024
    v_and_b32 v8, 31, v2
    s_lshl_b32 s59, s32, 5
    v_add_u32 v8, s59, v8              ; token
    v_lshlrev_b32 v9, 6, v8
    """)
    for i in range(4):
        vm.issue("st", f"buffer_load_dwordx4 v[{160+4*i}:{163+4*i}], v9, s[{SRD_B}:{SRD_B+3}], 0 offen offset:{16*i} sc1")
    k(f"""
    s_lshl_b32 s59, s{S_M}, 11
    s_mov_b32 m0, {TAB}
    s_nop 0
    """)
    vm.issue("tab", f"buffer_load_dwordx4 v3, s[{SRD_A}:{SRD_A+3}], s59 offen lds")
    vm.issue("tab", f"buffer_load_dwordx4 v3, s[{SRD_A}:{SRD_A+3}], s59 offen offset:1024 lds")
    gemm_a(k, vm, 6, D2, ACC, WF, "sc1", True, name="g")
    k.stamp()
    k(f"""
    v_add_f32 v160, v160, v162
    v_add_f32 v161, v161, v163
    v_add_f32 v164, v164, v166
    v_add_f32 v165, v165, v167
    v_add_f32 v168, v168, v170
    v_add_f32 v169, v169, v171
    v_add_f32 v172, v172, v174
    v_add_f32 v173, v173, v175
    v_add_f32 v160, v160, v164
    v_add_f32 v161, v161, v165
    v_add_f32 v168, v168, v172
    v_add_f32 v169, v169, v173
    v_add_f32 v160, v160, v168
    v_add_f32 v161, v161, v169
    v_mul_f32 v160, {fhex(1.0/640)}, v160
    v_mul_f32 v161, {fhex(1.0/640)}, v161
    v_fma_f32 v161, -v160, v160, v161
    v_max_f32 v161, 0, v161
    v_add_f32 v161, {fhex(1e-5)}, v161
    v_rsq_f32 v161, v161
    v_lshrrev_b32 v7, 5, v2
    v_lshlrev_b32 v6, 5, v7
    v_add_u32 v6, {TAB}, v6
    v_lshrrev_b32 v9, 4, v8
    v_mul_u32_u24 v9, 48*1024, v9
    v_and_b32 v10, 15, v8
    v_lshlrev_b32 v10, 4, v10
    v_add_u32 v9, v9, v10
    v_lshlrev_b32 v10, 8, v7
    v_add_u32 v9, v9, v10
    s_mul_i32 s59, s{S_M}, 6
    s_nop 7
    """)
    for T in range(6):
        acc = ACC + 16*T
        for a in range(4):
            k(f"ds_read_b128 v[{16+8*a}:{19+8*a}], v6 offset:{T*256 + a*64}")
            k(f"ds_read_b128 v[{20+8*a}:{23+8*a}], v6 offset:{T*256 + a*64 + 16}")
        k("s_waitcnt lgkmcnt(0)")
        for a in range(4):
            for r in range(4):
                e = acc + 4*a + r
                k(f"v_fma_f32 v{e}, -v160, v{16+8*a+r}, v{e}")
                k(f"v_fma_f32 v{e}, v{e}, v161, v{20+8*a+r}")
        for r in range(4):
            k(f"v_mul_f32 v{acc+r}, v{acc+r}, v{acc+4+r}")
            k(f"v_mul_f32 v{acc+8+r}, v{acc+8+r}, v{acc+12+r}")
        p = 176 + 4*T
        k(f"v_cvt_pk_bf16_f32 v{p}, v{acc}, v{acc+1}")
        k(f"v_cvt_pk_bf16_f32 v{p+1}, v{acc+2}, v{acc+3}")
        k(f"v_cvt_pk_bf16_f32 v{p+2}, v{acc+8}, v{acc+9}")
        k(f"v_cvt_pk_bf16_f32 v{p+3}, v{acc+10}, v{acc+11}")
        k(f"""
        s_add_u32 s60, s59, {T}
        s_lshr_b32 s61, s60, 1
        s_lshl_b32 s61, s61, 10
        s_and_b32 s60, s60, 1
        s_lshl_b32 s60, s60, 9
        s_add_u32 s61, s61, s60
        """)
        vm.issue("hh", f"buffer_store_dwordx4 v[{p}:{p+3}], v9, s[{SRD_C}:{SRD_C+3}], s61 offen sc1")
    D3 = 6
    k.wsrd(SRD_W, S_WS, "WD")
    k(f"s_mul_i32 s{S_WOFF}, s38, 240*1024")
    k("s_barrier")
    k.stamp()
    handoff(k, vm, 2, "hh", lambda: prefetch_linear(k, vm, lambda s: f"dw{s}", D3*20, 20, SRD_W, S_WOFF))
    ACC, WF, GV = 64, 16, 114
    k.wsrd(SRD_X, S_WS, "HH")
    k.srd(SRD_A, 96, 2048*1280)
    k.wsrd(SRD_B, S_WS, "MOD")
    b_geometry(48)
    for T in range(5):
        k(f"s_mov_b32 s59, {5*2560}")
        vm.issue("res2", f"buffer_load_dwordx4 v[{GV+4*T}:{GV+4*T+3}], v247, s[{SRD_B}:{SRD_B+3}], s59 offen offset:{T*64}")
    gemm_b(k, vm, 48, D3, ACC, WF, "d")
    k.stamp()
    gen.gemm_b_exchange(k, ACC, 16, S_WAVE)
    vm.wait("res2")
    for T in range(5):
        for r in range(4):
            e = ACC + 4*T + r; src = X1R + 2*T + r//2
            k(f"v_lshlrev_b32 v16, 16, v{src}" if r % 2 == 0 else f"v_and_b32 v16, 0xffff0000, v{src}")
            k(f"v_fma_f32 v{e}, v{e}, v{GV+4*T+r}, v16")
    for T in range(5):
        for r in range(2):
            k(f"v_cvt_pk_bf16_f32 v{20+2*T+r}, v{ACC+4*T+2*r}, v{ACC+4*T+2*r+1}")
    for T in range(5):
        k(f"buffer_store_dwordx2 v[{20+2*T}:{21+2*T}], v246, s[{SRD_A}:{SRD_A+3}], 0 offen offset:{T*32}")
    k.stamps_out(2, S_WS, S_WAVE)
    k("L_p_end:\ns_endpgm")
    return k.text(), NWG, 256, 160*1024, 512, 256

V2 = [("mod", gen.k_mod), ("prep", gen.k_prep), ("p", k_p)]
if __name__ == "__main__":
    out = sys.argv[1]
    if len(sys.argv) > 2 and sys.argv[2] == "prof": gen.PROF = True
    open(out, "w").write(gen.build(V2))
    print("written", out)
```

```python
import sys
import gen
from gen import K, WS, fhex, LOG2E, _ws
KB = 1024
if "B1P" not in WS:
    _ws("B1P", 20*16*512)
    _ws("CB2P", 20*16*2048)
gen.STAGE_MAJOR = True

def task_table():
    tab = [0]*256
    slots = {x: [x + 8*jj for jj in range(32)] for x in range(8)}
    def put(x, val): tab[slots[x].pop(0)] = val
    for s in range(20):
        x = s % 8
        for r in range(4): put(x, 2 | s << 4 | r << 10)
        for r in range(2): put(x, 1 | s << 4 | r << 10)
    rest = [3 | i << 4 for i in range(20)] + [6 | u << 4 for u in range(8)] + [5 | u << 4 for u in range(24)] + [4 | R << 4 for R in range(64)]
    for t in rest:
        x = max(range(8), key=lambda x: len(slots[x]))
        put(x, t)
    return tab

NT_ = "nt"
def k_k0():
    k = K("k0")
    k("s_cmp_ge_u32 s2, 256\ns_cbranch_scc1 L_k0_end")
    k.vprof = 127
    k.stamp()
    k("""
    s_getpc_b64 s[6:7]
    L_k0_pc:
    s_add_u32 s6, s6, (k0_tasks - L_k0_pc)
    s_addc_u32 s7, s7, 0
    s_lshl_b32 s8, s2, 2
    s_load_dword s30, s[6:7], s8
    """)
    k.kptr(4, "ws"); k.kptr(10, "wmod"); k.kptr(52, "c")
    k("""
    v_lshrrev_b32 v1, 6, v0
    v_and_b32 v2, 63, v0
    v_lshlrev_b32 v3, 4, v2
    v_readfirstlane_b32 s3, v1     ; wave 0..7
    s_waitcnt lgkmcnt(0)
    s_and_b32 s31, s30, 15         ; type
    s_bfe_u32 s32, s30, 0x60004    ; a
    s_bfe_u32 s33, s30, 0x4000a    ; b
    """)
    k.wsrd(12, 4, "FLAGS")
    k("""
    s_cmp_ge_u32 s2, 16
    s_cbranch_scc1 L_k0_noz
    v_lshlrev_b32 v8, 3, v0
    s_lshl_b32 s34, s2, 12
    v_mov_b32 v4, 0
    v_mov_b32 v5, 0
    buffer_store_dwordx2 v[4:5], v8, s[12:15], s34 offen
    s_nop 1
    L_k0_noz:
    s_cmp_eq_u32 s31, 0
    s_cbranch_scc1 L_k0_end
    s_cmp_eq_u32 s31, 4
    s_cbranch_scc1 L_k0_xn
    s_cmp_ge_u32 s31, 5
    s_cbranch_scc1 L_k0_tb
    """)
    SIL, CF, SF, SP, GP, MODW, WB = 0, 2048, 2048+128, 2048+256, 2560, 4096, 84*KB
    k.srd(16, 10, 640*7680)
    k.srd(20, 52, 1280)
    k(f"""
    s_lshl_b32 s36, s32, 6         ; a*64 bytes
    s_cmp_eq_u32 s31, 1
    s_cselect_b32 s34, 0, {3*1280}
    s_add_u32 s34, s34, s36
    s_add_u32 s35, s34, 1280
    s_cmp_eq_u32 s31, 3
    s_cbranch_scc0 L_k0_parts
    s_cmp_ge_u32 s32, 10
    s_cselect_b32 s34, {5*1280 - 1280 - 2*1280}, 0
    s_add_u32 s34, s34, {2*1280}
    s_lshl_b32 s36, s32, 7
    s_add_u32 s34, s34, s36
    s_add_u32 s35, s34, 64
    L_k0_parts:
    v_lshlrev_b32 v8, 4, v0
    buffer_load_dwordx4 v[16:19], v8, s[20:23], 0 offen
    v_lshrrev_b32 v9, 3, v2        ; rr
    v_and_b32 v10, 7, v2
    v_lshrrev_b32 v11, 1, v9
    v_and_b32 v11, 1, v11
    s_and_b32 s36, s3, 1
    s_lshl_b32 s36, s36, 1
    v_or_b32 v11, s36, v11
    v_lshrrev_b32 v12, 1, v10
    v_xor_b32 v12, v12, v11
    v_and_b32 v13, 1, v10
    v_lshl_or_b32 v12, v12, 1, v13
    v_and_b32 v13, 3, v12
    v_lshlrev_b32 v13, 4, v13      ; (c&3)*16
    v_mov_b32 v14, s34
    v_mov_b32 v15, s35
    v_cmp_gt_u32 vcc, 4, v12
    s_nop 1
    v_cndmask_b32 v14, v15, v14, vcc
    v_add_u32 v13, v13, v14
    v_mul_u32_u24 v14, 7680, v9
    v_add_u32 v13, v13, v14        ; voffset
    s_mul_i32 s37, s3, 8*7680
    s_lshl_b32 s38, s3, 10
    s_add_u32 s38, s38, {MODW}
    """)
    for it in range(10):
        k(f"s_mov_b32 m0, s38\ns_add_u32 s38, s38, 8192\nbuffer_load_dwordx4 v13, s[16:19], s37 offen {NT_} lds\ns_add_u32 s37, s37, {64*7680}")
    k("s_cmp_eq_u32 s31, 3\ns_cbranch_scc1 L_k0_wbdone")
    k("s_cmp_eq_u32 s31, 2\ns_cbranch_scc1 L_k0_wb2")
    k.kptr(40, "wqkv")
    k("s_waitcnt lgkmcnt(0)")
    k.srd(24, 40, 640*3840)
    k(f"""
    s_mul_i32 s36, s32, 32*3840
    s_mul_i32 s37, s33, 640
    s_add_u32 s36, s36, s37
    s_mov_b32 s39, 0
    L_k0_wb1_loop:
    s_lshl_b32 s37, s39, 3
    s_add_u32 s37, s37, s3
    s_cmp_ge_u32 s37, 66
    s_cbranch_scc1 L_k0_wbdone
    s_lshl_b32 s38, s37, 6
    v_add_u32 v8, s38, v2              ; chunk
    s_mov_b32 s41, 31776               ; 2^22/132
    v_mul_lo_u32 v9, v8, s41
    v_lshrrev_b32 v9, 22, v9           ; row
    v_mul_u32_u24 v10, 132, v9
    v_sub_u32 v10, v8, v10
    v_mul_u32_u24 v11, 1639, v10
    v_lshrrev_b32 v11, 16, v11
    v_mul_u32_u24 v12, 40, v11
    v_sub_u32 v12, v10, v12
    v_mul_u32_u24 v11, 1280, v11
    v_lshlrev_b32 v12, 4, v12
    v_add_u32 v11, v11, v12
    v_mul_u32_u24 v9, 3840, v9
    v_add_u32 v11, v11, v9
    v_cmp_le_u32 vcc, 120, v10
    v_mov_b32 v12, 0x40000000
    s_nop 0
    v_cndmask_b32 v11, v11, v12, vcc
    s_lshl_b32 s38, s37, 10
    s_add_u32 m0, s38, {WB}
    s_nop 0
    buffer_load_dwordx4 v11, s[24:27], s36 offen {NT_} lds
    s_add_u32 s39, s39, 1
    s_branch L_k0_wb1_loop
    """)
    k("L_k0_wb2:")
    k.kptr(40, "wg"); k.kptr(42, "wu")
    k("s_waitcnt lgkmcnt(0)")
    k.srd(24, 40, 640*3072); k.srd(44, 42, 640*3072)
    k(f"""
    s_mul_i32 s36, s32, 32*3072
    s_mul_i32 s37, s33, 768
    s_add_u32 s36, s36, s37
    s_mov_b32 s39, 0
    L_k0_wb2_loop:
    s_lshl_b32 s37, s39, 3
    s_add_u32 s37, s37, s3
    s_cmp_ge_u32 s37, 50
    s_cbranch_scc1 L_k0_wbdone
    s_lshl_b32 s38, s37, 6
    v_add_u32 v8, s38, v2
    v_mul_u32_u24 v9, 10486, v8
    v_lshrrev_b32 v9, 20, v9
    v_mul_u32_u24 v10, 100, v9
    v_sub_u32 v10, v8, v10
    v_mul_u32_u24 v9, 3072, v9
    v_cmp_le_u32 vcc, 48, v10
    v_subrev_u32 v12, 48, v10
    s_nop 0
    v_cndmask_b32 v11, v10, v12, vcc
    v_lshlrev_b32 v11, 4, v11
    v_add_u32 v11, v11, v9
    s_movk_i32 s42, 96
    v_cmp_le_u32 s[48:49], s42, v10
    v_mov_b32 v12, 0x40000000
    s_lshl_b32 s38, s37, 10
    v_cndmask_b32 v11, v11, v12, s[48:49]
    s_add_u32 m0, s38, {WB}
    s_mov_b64 s[50:51], exec
    s_andn2_b64 exec, exec, vcc
    buffer_load_dwordx4 v11, s[24:27], s36 offen {NT_} lds
    s_and_b64 exec, s[50:51], vcc
    buffer_load_dwordx4 v11, s[44:47], s36 offen {NT_} lds
    s_mov_b64 exec, s[50:51]
    s_add_u32 s39, s39, 1
    s_branch L_k0_wb2_loop
    L_k0_wbdone:
    """)
    k.stamp()
    k("""
    v_cmp_gt_u32 vcc, 80, v0
    s_and_saveexec_b64 s[48:49], vcc
    s_cbranch_execz L_k0_nosil
    """)
    k("s_waitcnt vmcnt(10)")
    k(f"s_mov_b32 s36, {fhex(-LOG2E)}")
    for r in range(4):
        k(f"v_lshlrev_b32 v{20+2*r}, 16, v{16+r}\nv_and_b32 v{21+2*r}, 0xffff0000, v{16+r}")
    for e in range(8): k(f"v_mul_f32 v{30+e}, s36, v{20+e}")
    for e in range(8): k(f"v_exp_f32 v{30+e}, v{30+e}")
    k("s_nop 0")
    for e in range(8): k(f"v_add_f32 v{30+e}, 1.0, v{30+e}")
    for e in range(8): k(f"v_rcp_f32 v{30+e}, v{30+e}")
    k("s_nop 0")
    for e in range(8): k(f"v_mul_f32 v{20+e}, v{20+e}, v{30+e}")
    for r in range(4): k(f"v_cvt_pk_bf16_f32 v{16+r}, v{20+2*r}, v{21+2*r}")
    k(f"""
    v_lshlrev_b32 v8, 4, v0
    ds_write_b128 v8, v[16:19] offset:{SIL}
    L_k0_nosil:
    s_mov_b64 exec, s[48:49]
    s_waitcnt vmcnt(0) lgkmcnt(0)
    s_barrier
    """)
    k.stamp()
    k(f"""
    s_and_b32 s36, s3, 3               ; ct
    s_lshr_b32 s37, s3, 2              ; kh
    v_lshrrev_b32 v8, 4, v2            ; q
    v_and_b32 v9, 15, v2               ; i
    v_lshrrev_b32 v10, 2, v9           ; i>>2
    v_lshl_add_u32 v11, v8, 3, v10
    v_lshrrev_b32 v12, 1, v10
    v_and_b32 v12, 1, v12
    v_and_b32 v13, 1, v8
    v_lshl_or_b32 v12, v13, 1, v12     ; f(row)
    v_xor_b32 v12, s36, v12
    v_lshlrev_b32 v12, 5, v12
    v_lshl_add_u32 v12, v11, 7, v12
    v_and_b32 v13, 3, v9
    v_lshl_add_u32 v12, v13, 3, v12
    s_mul_i32 s38, s37, 10*4096
    s_add_u32 s38, s38, {MODW}
    v_add_u32 v12, s38, v12
    v_lshlrev_b32 v13, 4, v8           ; q*16 bytes
    s_mul_i32 s38, s37, 640
    v_add_u32 v13, s38, v13
    """)
    for t in range(10):
        b = 16 + 8*(t % 2)
        k(f"ds_read_b128 v[{b}:{b+3}], v13 offset:{SIL + t*64}")
        k(f"ds_read_b64_tr_b16 v[{b+4}:{b+5}], v12 offset:{t*4096}")
        k(f"ds_read_b64_tr_b16 v[{b+6}:{b+7}], v12 offset:{t*4096 + 512}")
        k("s_waitcnt lgkmcnt(0)")
        k(f"v_mfma_f32_16x16x32_bf16 v[40:43], v[{b}:{b+3}], v[{b+4}:{b+7}], {'0' if t == 0 else 'v[40:43]'}")
    k(f"""
    s_nop 7
    s_lshl_b32 s38, s3, 6
    v_lshlrev_b32 v8, 2, v2
    v_add_u32 v8, s38, v8
    s_mov_b64 exec, 0xffff
    ds_write_b32 v8, v40 offset:{GP}
    s_mov_b64 exec, -1
    s_waitcnt lgkmcnt(0)
    s_barrier
    s_cmp_lg_u32 s3, 0
    s_cbranch_scc1 L_k0_pardone
    v_lshlrev_b32 v8, 2, v2
    ds_read_b32 v16, v8 offset:{GP}
    ds_read_b32 v17, v8 offset:{GP + 256}
    s_waitcnt lgkmcnt(0)
    v_add_f32 v16, v16, v17
    v_cvt_pk_bf16_f32 v16, v16, v16
    v_lshlrev_b32 v16, 16, v16         ; bf16(mod)
    s_cmp_eq_u32 s31, 3
    s_cbranch_scc0 L_k0_notgate
    """)
    k.wsrd(12, 4, "MOD")
    k(f"""
    s_lshl_b32 s36, s34, 1
    buffer_store_dword v16, v8, s[12:15], s36 offen
    s_branch L_k0_fin
    L_k0_notgate:
    v_add_f32 v17, 1.0, v16
    v_cvt_pk_bf16_f32 v17, v17, v17
    v_lshlrev_b32 v17, 16, v17
    v_cmp_gt_u32 vcc, 32, v2
    s_nop 1
    v_cndmask_b32 v16, v17, v16, vcc
    v_add_u32 v9, {SF}, v8
    v_add_u32 v10, {CF - 128}, v8
    v_cndmask_b32 v9, v10, v9, vcc
    ds_write_b32 v9, v16
    v_lshrrev_b32 v17, 16, v16
    v_lshlrev_b32 v10, 1, v2
    s_mov_b64 exec, 0xffffffff
    ds_write_b16 v10, v17 offset:{SP}
    s_mov_b64 exec, -1
    L_k0_pardone:
    s_cmp_eq_u32 s31, 3
    s_cbranch_scc1 L_k0_fin
    s_waitcnt lgkmcnt(0)
    s_barrier
    """)
    k.stamp()
    k(f"""
    v_lshrrev_b32 v8, 5, v2            ; h
    v_lshlrev_b32 v9, 5, v8            ; h*32 bytes
    v_lshlrev_b32 v10, 4, v8           ; h*16 bytes
    """)
    for ks in range(2):
        k(f"ds_read_b128 v[{48+8*ks}:{51+8*ks}], v9 offset:{CF + ks*64}")
        k(f"ds_read_b128 v[{52+8*ks}:{55+8*ks}], v9 offset:{CF + ks*64 + 16}")
        k(f"ds_read_b128 v[{64+4*ks}:{67+4*ks}], v10 offset:{SP + ks*32}")
    k(f"""
    v_lshrrev_b32 v11, 4, v2           ; G
    v_and_b32 v12, 15, v2              ; i
    v_lshrrev_b32 v13, 2, v12          ; i>>2
    v_lshl_add_u32 v13, v8, 3, v13     ; row = 8h + (i>>2)
    v_and_b32 v14, 3, v12
    v_and_b32 v15, 1, v11              ; G&1
    v_mov_b32 v72, 0x3f803f80
    s_cmp_eq_u32 s31, 2
    s_cbranch_scc1 L_k0_prod2
    """)
    def produce(stride, addr_reg, dst_srd, dst_soff, bias_reg, cs_reg):
        for ks in range(2):
            k(f"ds_read_b64_tr_b16 v[{16+4*ks}:{17+4*ks}], {addr_reg} offset:{ks*16*stride}")
            k(f"ds_read_b64_tr_b16 v[{18+4*ks}:{19+4*ks}], {addr_reg} offset:{ks*16*stride + 4*stride}")
        for ks in range(2):
            k(f"s_waitcnt lgkmcnt({2*(1-ks)})")
            R = 16 + 4*ks
            for r in range(4): k(f"v_dot2c_f32_bf16 v{bias_reg}, v{R+r}, v{64+4*ks+r}")
            for r in range(4):
                k(f"v_lshlrev_b32 v{24+2*r}, 16, v{R+r}\nv_and_b32 v{25+2*r}, 0xffff0000, v{R+r}")
            for e in range(8): k(f"v_mul_f32 v{24+e}, v{24+e}, v{48+8*ks+e}")
            o = 32 + 4*ks
            for r in range(4): k(f"v_cvt_pk_bf16_f32 v{o+r}, v{24+2*r}, v{25+2*r}")
            if cs_reg is not None:
                for r in range(4): k(f"v_dot2c_f32_bf16 v{cs_reg}, v{o+r}, v72")
            k(f"buffer_store_dwordx4 v[{o}:{o+3}], v3, s[{dst_srd}:{dst_srd+3}], {dst_soff[ks]} offen")
        k("s_nop 2")
    k.wsrd(12, 4, "W1"); k.wsrd(24, 4, "B1P")
    k(f"""
    v_mul_u32_u24 v13, 2112, v13
    v_add_u32 v13, {WB}, v13
    s_lshl_b32 s36, s33, 3
    s_add_u32 s36, s36, s3             ; g
    s_waitcnt lgkmcnt(0)
    """)
    for T in range(4):
        k(f"""
        v_lshl_add_u32 v40, v15, 2, v14
        v_add_u32 v40, {8*(T&1)}, v40       ; u
        s_lshl_b32 s37, s3, 1
        s_add_u32 s37, s37, {T>>1}
        s_mul_i32 s37, s37, 40
        v_lshlrev_b32 v41, 3, v40           ; 8u  (Q)
        v_add_u32 v42, {640 - 48}, v41      ; K: 640 + 8(u-6)
        v_add_u32 v43, {1280 - 88}, v41     ; V: 1280 + 8(u-11)
        v_cmp_gt_u32 vcc, 11, v40
        s_nop 1
        v_cndmask_b32 v43, v43, v42, vcc
        v_cmp_gt_u32 vcc, 5, v40
        s_nop 1
        v_cndmask_b32 v43, v43, v41, vcc
        v_add_u32 v43, s37, v43
        v_cmp_eq_u32 vcc, 5, v40
        v_mov_b32 v41, 1920
        s_nop 0
        v_cndmask_b32 v43, v43, v41, vcc
        v_add_u32 v43, v13, v43
        v_mov_b32 v44, 0
        s_mul_i32 s38, s36, 160*1024
        s_lshl_b32 s39, s32, 13
        s_add_u32 s38, s38, s39
        s_add_u32 s38, s38, {T*1024}
        s_add_u32 s39, s38, 4096
        """)
        produce(2112, "v43", 12, ("s38", "s39"), 44, None)
        k(f"""
        v_mov_b32 v45, v44
        s_nop 1
        v_permlane32_swap_b32 v44, v45
        s_nop 1
        v_add_f32 v44, v44, v45
        s_lshl_b32 s38, s32, 4
        s_add_u32 s38, s38, s36
        s_lshl_b32 s38, s38, 9              ; (slice*16 + g)*512
        s_add_u32 s38, s38, {T*128}
        v_lshlrev_b32 v45, 2, v2
        s_mov_b64 exec, 0xffffffff
        buffer_store_dword v44, v45, s[24:27], s38 offen
        s_mov_b64 exec, -1
        """)
    k("s_branch L_k0_fin")
    k("L_k0_prod2:")
    k.wsrd(12, 4, "W2"); k.wsrd(24, 4, "CB2P")
    k(f"""
    v_mul_u32_u24 v13, 1600, v13
    v_add_u32 v13, {WB}, v13
    v_lshrrev_b32 v40, 1, v14
    v_mul_u32_u24 v40, 768, v40
    v_and_b32 v41, 1, v14
    v_lshlrev_b32 v41, 3, v41
    v_lshl_add_u32 v41, v15, 4, v41
    v_add3_u32 v13, v13, v40, v41
    s_lshr_b32 s36, s3, 1              ; jl
    s_and_b32 s37, s3, 1
    s_mul_i32 s37, s37, 3              ; first T
    s_lshl_b32 s40, s33, 2
    s_add_u32 s40, s40, s36            ; j
    v_and_b32 v46, 31, v2
    v_lshrrev_b32 v47, 2, v46
    v_lshlrev_b32 v47, 5, v47
    v_and_b32 v46, 3, v46
    v_lshl_add_u32 v47, v46, 2, v47
    s_waitcnt lgkmcnt(0)
    """)
    for x in range(3):
        k(f"""
        s_add_u32 s41, s37, {x}             ; T
        s_mul_i32 s38, s36, 192
        s_lshl_b32 s39, s41, 5
        s_add_u32 s38, s38, s39             ; (96 jl + 16 T)*2
        v_add_u32 v43, s38, v13
        v_mov_b32 v44, 0
        v_mov_b32 v42, 0
        s_mul_i32 s38, s40, 240*1024
        s_mul_i32 s39, s32, 2*6144
        s_add_u32 s38, s38, s39
        s_lshl_b32 s39, s41, 10
        s_add_u32 s38, s38, s39
        s_add_u32 s39, s38, 6144
        """)
        produce(1600, "v43", 12, ("s38", "s39"), 44, 42)
        k(f"""
        v_mov_b32 v45, v44
        v_mov_b32 v41, v42
        s_nop 1
        v_permlane32_swap_b32 v44, v45
        v_permlane32_swap_b32 v42, v41
        s_nop 1
        v_add_f32 v44, v44, v45
        v_add_f32 v42, v42, v41
        s_lshl_b32 s38, s32, 4
        s_add_u32 s38, s38, s40
        s_lshl_b32 s38, s38, 11             ; (slice*16 + j)*2048
        s_lshl_b32 s39, s41, 8
        s_add_u32 s38, s38, s39
        s_mov_b64 exec, 0xffffffff
        buffer_store_dword v42, v47, s[24:27], s38 offen
        buffer_store_dword v44, v47, s[24:27], s38 offen offset:16
        s_mov_b64 exec, -1
        """)
    k("s_branch L_k0_fin")

    k("L_k0_xn:")
    k.kptr(40, "x")
    k("s_waitcnt lgkmcnt(0)")
    k.srd(16, 40, 2048*1280); k.wsrd(12, 4, "H1")
    k(f"""
    s_mul_i32 s36, s32, 32*1280
    s_mov_b32 s39, 0
    L_k0_xn_loop:
    s_lshl_b32 s37, s39, 3
    s_add_u32 s37, s37, s3
    s_cmp_ge_u32 s37, 41
    s_cbranch_scc1 L_k0_xn_loaded
    s_lshl_b32 s38, s37, 6
    v_add_u32 v8, s38, v2              ; chunk
    v_mul_u32_u24 v9, 12946, v8
    v_lshrrev_b32 v9, 20, v9
    v_mul_u32_u24 v10, 81, v9
    v_sub_u32 v10, v8, v10
    v_mul_u32_u24 v11, 1280, v9
    v_lshl_add_u32 v11, v10, 4, v11
    v_cmp_le_u32 vcc, 80, v10
    v_mov_b32 v12, 0x40000000
    v_cmp_le_u32 s[48:49], 32, v9
    s_or_b64 vcc, vcc, s[48:49]
    s_nop 0
    v_cndmask_b32 v11, v11, v12, vcc
    s_lshl_b32 s38, s37, 10
    s_mov_b32 m0, s38
    s_nop 0
    buffer_load_dwordx4 v11, s[16:19], s36 offen {NT_} lds
    s_add_u32 s39, s39, 1
    s_branch L_k0_xn_loop
    L_k0_xn_loaded:
    v_and_b32 v8, 31, v2               ; token
    v_lshrrev_b32 v9, 5, v2            ; h
    v_mul_u32_u24 v10, 1296, v8
    v_lshl_add_u32 v10, v9, 4, v10
    s_mul_i32 s37, s3, 160
    v_add_u32 v10, s37, v10
    s_waitcnt vmcnt(0)
    s_barrier
    """)
    for it in range(5): k(f"ds_read_b128 v[{16+4*it}:{19+4*it}], v10 offset:{it*32}")
    k("s_waitcnt lgkmcnt(0)")
    for r in range(20): k(f"v_lshlrev_b32 v{40+2*r}, 16, v{16+r}\nv_and_b32 v{41+2*r}, 0xffff0000, v{16+r}")
    k("v_add_f32 v14, v40, v41\nv_add_f32 v15, v42, v43")
    for e in range(4, 40, 2): k(f"v_add_f32 v14, v14, v{40+e}\nv_add_f32 v15, v15, v{41+e}")
    RED = 48*KB
    k(f"""
    v_add_f32 v14, v14, v15
    v_mov_b32 v15, v14
    s_nop 1
    v_permlane32_swap_b32 v14, v15
    s_nop 1
    v_add_f32 v14, v14, v15
    v_lshlrev_b32 v11, 2, v8
    s_lshl_b32 s37, s3, 7
    v_add_u32 v12, s37, v11
    ds_write_b32 v12, v14 offset:{RED}
    s_waitcnt lgkmcnt(0)
    s_barrier
    """)
    for w in range(8): k(f"ds_read_b32 v{16+w}, v11 offset:{RED + w*128}")
    k("s_waitcnt lgkmcnt(0)")
    for w in range(1, 8): k(f"v_add_f32 v16, v16, v{16+w}")
    k(f"v_mul_f32 v14, {fhex(1.0/640)}, v16")
    for e in range(40): k(f"v_sub_f32 v{40+e}, v{40+e}, v14")
    k("v_mul_f32 v15, v40, v40\nv_mul_f32 v13, v41, v41")
    for e in range(2, 40, 2): k(f"v_fmac_f32 v15, v{40+e}, v{40+e}\nv_fmac_f32 v13, v{41+e}, v{41+e}")
    k(f"""
    v_add_f32 v15, v15, v13
    v_mov_b32 v13, v15
    s_nop 1
    v_permlane32_swap_b32 v15, v13
    s_nop 1
    v_add_f32 v15, v15, v13
    ds_write_b32 v12, v15 offset:{RED + 1024}
    s_waitcnt lgkmcnt(0)
    s_barrier
    """)
    for w in range(8): k(f"ds_read_b32 v{16+w}, v11 offset:{RED + 1024 + w*128}")
    k("s_waitcnt lgkmcnt(0)")
    for w in range(1, 8): k(f"v_add_f32 v16, v16, v{16+w}")
    k(f"v_mul_f32 v15, {fhex(1.0/640)}, v16\nv_add_f32 v15, {fhex(1e-5)}, v15\nv_rsq_f32 v15, v15\ns_nop 0")
    for e in range(40): k(f"v_mul_f32 v{40+e}, v{40+e}, v15")
    for it in range(5):
        for r in range(4): k(f"v_cvt_pk_bf16_f32 v{16+4*it+r}, v{40+8*it+2*r}, v{41+8*it+2*r}")
        k(f"""
        s_mul_i32 s37, s32, 40
        s_mul_i32 s38, s3, 5
        s_add_u32 s37, s37, s38
        s_add_u32 s37, s37, {it}
        s_lshl_b32 s37, s37, 10
        buffer_store_dwordx4 v[{16+4*it}:{19+4*it}], v3, s[12:15], s37 offen
        """)
    k("s_branch L_k0_fin")

    k("L_k0_tb:")
    k.kptr(40, "wd"); k.kptr(42, "wo")
    k(f"""
    s_waitcnt lgkmcnt(0)
    s_cmp_eq_u32 s31, 5
    s_cselect_b32 s40, s40, s42
    s_cselect_b32 s41, s41, s43
    s_cselect_b32 s34, 64, 80              ; rows
    s_mov_b32 s35, {640*1280}
    s_cselect_b32 s35, {1536*1280}, s35
    s_mov_b32 s16, s40
    s_and_b32 s17, s41, 0xffff
    s_mov_b32 s18, s35
    s_mov_b32 s19, 0x20000
    s_mul_i32 s36, s32, s34
    s_mul_i32 s36, s36, 1280
    s_mul_i32 s35, s34, 82
    s_add_u32 s35, s35, 63
    s_lshr_b32 s35, s35, 6
    s_mov_b32 s39, 0
    L_k0_tb_loop:
    s_lshl_b32 s37, s39, 3
    s_add_u32 s37, s37, s3
    s_cmp_ge_u32 s37, s35
    s_cbranch_scc1 L_k0_tb_loaded
    s_lshl_b32 s38, s37, 6
    v_add_u32 v8, s38, v2
    v_mul_u32_u24 v9, 12788, v8
    v_lshrrev_b32 v9, 20, v9
    v_mul_u32_u24 v10, 82, v9
    v_sub_u32 v10, v8, v10
    v_mul_u32_u24 v11, 1280, v9
    v_lshl_add_u32 v11, v10, 4, v11
    v_cmp_le_u32 vcc, 80, v10
    v_mov_b32 v12, 0x40000000
    v_cmp_le_u32 s[48:49], s34, v9
    s_or_b64 vcc, vcc, s[48:49]
    s_nop 0
    v_cndmask_b32 v11, v11, v12, vcc
    s_lshl_b32 s38, s37, 10
    s_mov_b32 m0, s38
    s_nop 0
    buffer_load_dwordx4 v11, s[16:19], s36 offen {NT_} lds
    s_add_u32 s39, s39, 1
    s_branch L_k0_tb_loop
    L_k0_tb_loaded:
    v_lshrrev_b32 v8, 4, v2                ; G
    v_and_b32 v9, 15, v2                   ; i
    v_lshrrev_b32 v10, 2, v9
    v_and_b32 v11, 3, v9
    v_lshlrev_b32 v11, 3, v11
    s_mul_i32 s37, s3, 160
    v_add_u32 v11, s37, v11
    v_lshlrev_b32 v12, 4, v9               ; (lane&15)*16
    s_waitcnt vmcnt(0)
    s_barrier
    s_cmp_eq_u32 s31, 6
    s_cbranch_scc1 L_k0_wo
    """)
    k.wsrd(12, 4, "WD")
    k(f"""
    v_lshrrev_b32 v13, 1, v8
    v_lshlrev_b32 v13, 4, v13
    v_and_b32 v14, 1, v8
    v_lshl_add_u32 v13, v14, 2, v13
    v_add_u32 v13, v13, v10
    v_mul_u32_u24 v13, 1312, v13
    v_add_u32 v13, v13, v11
    """)
    for ks in range(2):
        k(f"s_lshl_b32 s40, s32, 1\ns_add_u32 s40, s40, {ks}")
        gen.stage_major(k, 40, 24)
        k("s_mul_i32 s40, s40, 5120\ns_mul_i32 s41, s3, 240*1024\ns_add_u32 s40, s40, s41")
        for T in range(5):
            d = 16 + 4*T
            k(f"ds_read_b64_tr_b16 v[{d}:{d+1}], v13 offset:{ks*32*1312 + T*32}")
            k(f"ds_read_b64_tr_b16 v[{d+2}:{d+3}], v13 offset:{ks*32*1312 + 8*1312 + T*32}")
        for T in range(5):
            d = 16 + 4*T
            k(f"s_waitcnt lgkmcnt({2*(4-T)})")
            if T == 4: k("s_add_u32 s40, s40, 4096")
            k(f"buffer_store_dwordx4 v[{d}:{d+3}], v3, s[12:15], s40 offen offset:{(T % 4)*1024}")
        k("s_nop 1")
    k("s_branch L_k0_fin")
    k("L_k0_wo:")
    k.wsrd(12, 4, "WO")
    for y in range(3):
        k(f"""
        v_add_u32 v13, {4*y}, v8               ; piece x
        v_cmp_gt_u32 vcc, 10, v13
        s_mov_b64 s[48:49], vcc
        v_mul_u32_u24 v14, 52, v13
        v_lshrrev_b32 v14, 8, v14              ; gl = x/5
        v_mul_u32_u24 v15, 5, v14
        v_sub_u32 v15, v13, v15                ; pp
        v_and_b32 v16, 1, v15
        v_lshlrev_b32 v16, 2, v16
        v_lshrrev_b32 v17, 1, v15
        v_mul_u32_u24 v17, 20, v17
        v_add_u32 v16, v16, v17                ; base0
        v_add_u32 v17, 8, v16                  ; base1
        v_cmp_eq_u32 vcc, 4, v15
        v_mov_b32 v18, 16
        v_mov_b32 v19, 36
        v_cndmask_b32 v16, v16, v18, vcc
        v_cndmask_b32 v17, v17, v19, vcc
        v_mul_u32_u24 v14, 40, v14
        v_add3_u32 v16, v16, v14, v10
        v_add3_u32 v17, v17, v14, v10
        v_mul_u32_u24 v16, 1312, v16
        v_mul_u32_u24 v17, 1312, v17
        v_add_u32 v16, v16, v11
        v_add_u32 v17, v17, v11
        v_cndmask_b32 v16, v11, v16, s[48:49]
        v_cndmask_b32 v17, v11, v17, s[48:49]
        s_mul_i32 s40, s32, 10
        v_add_u32 v18, s40, v13                ; p
        v_lshrrev_b32 v19, 2, v18              ; s
        v_and_b32 v18, 3, v18                  ; q
        v_cmp_le_u32 vcc, 10, v19
        v_subrev_u32 v20, 10, v19
        s_nop 0
        v_cndmask_b32 v20, v19, v20, vcc       ; s'
        v_cndmask_b32 v21, 0, 2, vcc           ; half*2
        v_lshrrev_b32 v22, 1, v20
        v_lshl_add_u32 v21, v22, 2, v21
        v_and_b32 v20, 1, v20
        v_add_u32 v21, v21, v20                ; slot
        v_mul_u32_u24 v21, 5120, v21
        v_lshl_add_u32 v21, v18, 8, v21
        v_add_u32 v21, v21, v12
        s_mul_i32 s41, s3, 100*1024
        """)
        for T in range(5):
            d = 24 + 4*T
            k(f"ds_read_b64_tr_b16 v[{d}:{d+1}], v16 offset:{T*32}")
            k(f"ds_read_b64_tr_b16 v[{d+2}:{d+3}], v17 offset:{T*32}")
        k("s_mov_b64 exec, s[48:49]")
        for T in range(5):
            d = 24 + 4*T
            k(f"s_waitcnt lgkmcnt({2*(4-T)})")
            if T == 4: k("s_add_u32 s41, s41, 4096")
            k(f"buffer_store_dwordx4 v[{d}:{d+3}], v21, s[12:15], s41 offen offset:{(T % 4)*1024}")
        k("s_mov_b64 exec, -1\ns_nop 1")
    k("L_k0_fin:")
    k.stamps_out(0, 4, 3)
    k("L_k0_end:")
    k("s_endpgm")
    k("k0_tasks:")
    tab = task_table()
    for i in range(0, 256, 8): k(".long " + ", ".join(str(v) for v in tab[i:i+8]))
    return k.text(), 256, 512, 154*1024, 128, 128

if __name__ == "__main__":
    out = sys.argv[1]
    import gen3
    open(out, "w").write(gen.build([("k0", k_k0)]))
```

```python
import sys
import gen
import gen4
from gen import K, WS, fhex, LOG2E
from gen2 import VM, poll, team_counter_off, SPIN_LIMIT
gen.STAGE_MAJOR = True

S_WS, S_WAVE, S_B, S_M = 4, 3, 30, 31
S_W4 = 29
SRD_X, SRD_W, SRD_F = 8, 12, 16
SRD_A, SRD_B, SRD_C = 20, 24, 40
S_XOFF, S_WOFF = 33, 34
S_XCUR, S_WCUR = 39, 28
S_ROT = 98
KB = 1024
ROT = False
K0 = True
def rot_setup(k, NS, mulb):
    if not ROT:
        k(f"s_mov_b32 s{S_ROT}, 0"); return
    k(f"""
    s_and_b32 s{S_ROT}, s{S_B}, 3
    s_mul_i32 s{S_ROT}, s{S_ROT}, {mulb}
    s_and_b32 s59, s{S_M}, 7
    s_add_u32 s{S_ROT}, s{S_ROT}, s59
    """)
    for _ in range(-(-(7 + 3*mulb + 1)//NS)):
        k(f"s_cmp_ge_u32 s{S_ROT}, {NS}\ns_cselect_b32 s59, {NS}, 0\ns_sub_u32 s{S_ROT}, s{S_ROT}, s59")
def cur_init(k, scur, sbase, stage_bytes):
    k(f"s_mul_i32 s{scur}, s{S_ROT}, {stage_bytes}\ns_add_u32 s{scur}, s{scur}, s{sbase}")
def cur_next(scur, sbase, stage_bytes, NS):
    return (f"s_add_u32 s{scur}, s{scur}, {stage_bytes}\ns_add_u32 s59, s{sbase}, {stage_bytes*NS}\n"
            f"s_cmp_eq_u32 s{scur}, s59\ns_cselect_b32 s{scur}, s{sbase}, s{scur}")

class Streams:
    def __init__(self, k): self.k = k; self.n = {"C": 0, "H": 0}; self.cur = None
    def use(self, which):
        if self.cur: self.n[self.cur] = self.k.nstamp
        self.cur = which; self.k.nstamp = self.n[which]
    def both(self):
        if self.cur: self.n[self.cur] = self.k.nstamp
        m = max(self.n.values()); self.n = {"C": m, "H": m}; self.k.nstamp = m; self.cur = None
    def sync_after(self):
        self.n = {"C": self.k.nstamp, "H": self.k.nstamp}

SY = 158*1024
def lds_arrive(k, idx):
    k(f"""
    v_mov_b32 v12, {SY + idx*8}
    v_mov_b32 v13, 1
    s_mov_b64 exec, 1
    ds_add_u32 v12, v13
    s_mov_b64 exec, -1
    """)
def lds_wait(k, off, target):
    lab = k.lab("lw"); done = k.lab("lwd")
    k(f"""
    v_mov_b32 v12, {off}
    s_mov_b32 s63, {SPIN_LIMIT*8}
    {lab}:
    ds_read_b32 v14, v12
    s_waitcnt lgkmcnt(0)
    v_readfirstlane_b32 s60, v14
    s_cmp_ge_u32 s60, {target}
    s_cbranch_scc1 {done}
    s_sub_u32 s63, s63, 1
    s_cmp_lg_u32 s63, 0
    s_cbranch_scc1 {lab}
    {done}:
    """)
def lds_ready(k, idx):
    k(f"""
    v_mov_b32 v12, {SY + idx*8 + 4}
    v_mov_b32 v13, 1
    s_mov_b64 exec, 1
    ds_write_b32 v12, v13
    s_mov_b64 exec, -1
    """)
def lds_issued(k, idx):
    k(f"""
    v_mov_b32 v12, {SY + 64 + idx*4}
    v_mov_b32 v13, 1
    s_mov_b64 exec, 1
    ds_add_u32 v12, v13
    s_mov_b64 exec, -1
    """)
def c_handoff(k, idx, narr):
    lds_arrive(k, idx)
    lab = k.lab("nosig"); lj = k.lab("hj")
    k(f"s_cmp_lg_u32 s{S_WAVE}, 0\ns_cbranch_scc1 {lab}")
    lds_wait(k, SY + idx*8, narr)
    team_counter_off(k, idx-1, 60)
    k.rstamp(44 + 2*(idx-1))
    k(f"""
    v_mov_b32 v12, s60
    v_mov_b32 v13, 1
    s_mov_b64 exec, 1
    buffer_atomic_add v13, v12, s[{SRD_F}:{SRD_F+3}], 0 offen sc1
    """)
    poll(k, 1, 16)
    k.rstamp(45 + 2*(idx-1))
    lds_ready(k, idx)
    k(f"s_branch {lj}\n{lab}:")
    lds_wait(k, SY + idx*8 + 4, 1)
    k(f"{lj}:")

def h_stage(k, vm, tag, lds_off, NS, per_wave):
    k(f"s_add_u32 s61, s{S_WCUR}, s62\ns_add_u32 m0, s62, {lds_off}")
    k(cur_next(S_WCUR, S_WOFF, per_wave*4*KB, NS))
    for q in range(per_wave):
        if q == 4: k("s_add_u32 s61, s61, 4096\ns_add_u32 m0, m0, 4096\ns_nop 0")
        vm.issue(tag, f"buffer_load_dwordx4 v3, s[{SRD_W}:{SRD_W+3}], s61 offen offset:{(q%4)*1024} lds")

def h_gemm(k, vm, name, NS, per_wave, slot_addr, D, already, lead=2, tail=None, post=None, pre0=None):
    SB = per_wave*4*KB
    k(f"s_mul_i32 s62, s{S_W4}, {per_wave*KB}")
    issued = already
    def one():
        nonlocal issued
        h_stage(k, vm, f"{name}w{issued}", slot_addr(issued), NS, per_wave); issued += 1
    while issued < min(lead, NS): one()
    if pre0: pre0()
    k("s_waitcnt lgkmcnt(0)")
    for s in range(NS):
        vm.wait(f"{name}w{s}")
        k("s_barrier")
        n = 0
        while issued < NS and issued - D <= s-1 and n < 2:
            one(); n += 1
        if issued == NS and tail is not None and n == 0:
            tail(); tail = None
        if post is not None and issued == NS and n == 0: post(s)
    assert issued == NS and tail is None

def c_gemm_a(k, vm, name, NT, slot_addr, ACC, WF, XR, NXR, xflags, x0, extra=(), rate=1, init=None):
    NS, KS = 10, 4
    def lds(s, idx):
        off = slot_addr(s) + idx*KB
        return f"v{3 + off//65536}", off % 65536
    def xreg(n): return XR + 4*(n % NXR)
    def xload(n):
        s, ss = divmod(n, KS)
        pre = (f"s_mov_b32 s{35+(s%2)}, s{S_XCUR}\n" + cur_next(S_XCUR, S_XOFF, KS*KB, NS)) if ss == 0 else None
        return (f"{name}x{n}", f"buffer_load_dwordx4 v[{xreg(n)}:{xreg(n)+3}], v3, s[{SRD_X}:{SRD_X+3}], s{35+(s%2)} offen offset:{ss*KB} {xflags}", pre)
    def emit(op):
        tag, text, pre = op
        if pre: k(pre)
        vm.issue(tag, text)
    N = NS*KS
    cur_init(k, S_XCUR, S_XOFF, KS*KB)
    for n in range(x0): emit(xload(n))
    sched = [[] for _ in range(N)]
    nxt = x0
    for step in range(N):
        cnt = 0
        while nxt < N and nxt - NXR < step and cnt < rate:
            sched[step].append(xload(nxt)); nxt += 1; cnt += 1
    assert nxt == N
    for step, op in extra: sched[step].append(op)
    def read(n, T, buf):
        s, ss = divmod(n, KS)
        v, off = lds(s, ss*NT+T)
        r = WF + buf*NT*4 + T*4
        k(f"ds_read_b128 v[{r}:{r+3}], {v} offset:{off}")
    k.stamp()
    k("s_barrier")
    k.stamp()
    for T in range(NT): read(0, T, 0)
    if init: init()
    buf = 0
    for n in range(N):
        s, ss = divmod(n, KS)
        if ss == 0 and s in (3, 6): k.stamp()
        more = n+1 < N
        k("s_waitcnt lgkmcnt(0)")
        if ss == KS-1 and more: k("s_barrier")
        vm.wait(f"{name}x{n}")
        ops = list(sched[n])
        rd = list(range(NT)) if more else []
        for T in range(NT):
            r = WF + buf*NT*4 + T*4
            c = f"v[{ACC+16*T}:{ACC+16*T+15}]"
            src = "0" if (n == 0 and not init) else c
            k(f"v_mfma_f32_32x32x16_bf16 {c}, v[{r}:{r+3}], v[{xreg(n)}:{xreg(n)+3}], {src}")
            for _ in range(2):
                if rd: read(n+1, rd.pop(0), buf ^ 1)
            if not rd and ops and T >= 1 and T < NT-1: emit(ops.pop(0))
        while ops: emit(ops.pop(0))
        buf ^= 1

def c_gemm_b(k, vm, name, KS, slot_addr, ACC, WF, XR, NXS, x0):
    H = KS//2; NS = H//2
    def xreg(n, tt): return XR + 8*(n % NXS) + 4*tt
    def xload(n, tt):
        i, ss = divmod(n, 2)
        pre = None
        if ss == 0 and tt == 0: pre = f"s_mov_b32 s35, s{S_XCUR}\ns_add_u32 s36, s{S_XCUR}, {KS*KB}\n" + cur_next(S_XCUR, S_XOFF, 2*KB, NS)
        return (f"{name}x{n}", f"buffer_load_dwordx4 v[{xreg(n,tt)}:{xreg(n,tt)+3}], v3, s[{SRD_X}:{SRD_X+3}], s{35+tt} offen offset:{ss*KB} sc1", pre)
    def emit(op):
        tag, text, pre = op
        if pre: k(pre)
        vm.issue(tag, text)
    N = NS*2
    k(f"""
    s_lshr_b32 s60, s{S_WAVE}, 1
    s_mul_i32 s60, s60, 10240
    v_add_u32 v6, s60, v3
    v_add_u32 v7, 0x10000, v6
    v_add_u32 v8, 0x20000, v6
    """)
    cur_init(k, S_XCUR, S_XOFF, 2*KB)
    for n in range(min(x0, N)):
        emit(xload(n, 0)); emit(xload(n, 1))
    sched = [[] for _ in range(N)]
    nxt = min(x0, N)
    for step in range(N):
        if nxt < N and nxt - NXS < step:
            sched[step] += [xload(nxt, 0), xload(nxt, 1)]; nxt += 1
    assert nxt == N
    def read(n, T, buf):
        i, ss = divmod(n, 2)
        off = slot_addr(i) + (ss*5+T)*KB
        r = WF + buf*20 + T*4
        k(f"ds_read_b128 v[{r}:{r+3}], v{6 + off//65536} offset:{off % 65536}")
    k.stamp()
    k("s_barrier")
    for T in range(5): read(0, T, 0)
    buf = 0
    for n in range(N):
        i, ss = divmod(n, 2)
        if ss == 0 and NS > 6 and i in (4, 8): k.stamp()
        more = n+1 < N
        k("s_waitcnt lgkmcnt(0)")
        if ss == 1 and more: k("s_barrier")
        vm.wait(f"{name}x{n}")
        ops = list(sched[n])
        rd = list(range(5)) if more else []
        cnt = 0
        for tt in range(2):
            for T in range(5):
                r = WF + buf*20 + T*4
                c = ACC + (tt*5+T)*4
                cs = f"v[{c}:{c+3}]"
                src = "0" if n == 0 else cs
                k(f"v_mfma_f32_16x16x32_bf16 {cs}, v[{r}:{r+3}], v[{xreg(n,tt)}:{xreg(n,tt)+3}], {src}")
                if rd: read(n+1, rd.pop(0), buf ^ 1)
                elif ops and cnt % 2 == 1: emit(ops.pop(0))
                cnt += 1
        while ops: emit(ops.pop(0))
        buf ^= 1
    k("s_nop 7")

def c_exchange(k, ACC, TMP, XB):
    k("s_barrier")
    l1 = k.lab("xk1"); l2 = k.lab("xdone")
    k(f"""
    s_mul_i32 s60, s{S_WAVE}, 5120
    s_add_u32 s60, s60, {XB}
    v_add_u32 v6, s60, v3
    s_xor_b32 s61, s{S_WAVE}, 2
    s_mul_i32 s61, s61, 5120
    s_add_u32 s61, s61, {XB}
    v_add_u32 v7, s61, v3
    s_lshr_b32 s61, s{S_WAVE}, 1
    s_cmp_eq_u32 s61, 1
    s_cbranch_scc1 {l1}
    """)
    for T in range(5):
        c = ACC + (5+T)*4
        k(f"ds_write_b128 v6, v[{c}:{c+3}] offset:{T*KB}")
    k(f"s_branch {l2}\n{l1}:")
    for T in range(5):
        c = ACC + T*4
        k(f"ds_write_b128 v6, v[{c}:{c+3}] offset:{T*KB}")
    k("s_nop 1")
    for r in range(20): k(f"v_mov_b32 v{ACC+r}, v{ACC+20+r}")
    k(f"{l2}:\ns_waitcnt lgkmcnt(0)\ns_barrier")
    for T in range(5): k(f"ds_read_b128 v[{TMP+4*T}:{TMP+4*T+3}], v7 offset:{T*KB}")
    k("s_waitcnt lgkmcnt(0)")
    for r in range(20): k(f"v_add_f32 v{ACC+r}, v{ACC+r}, v{TMP+r}")

def c_signal_poll(k, idx):
    lab = k.lab("nosig")
    k(f"s_cmp_lg_u32 s{S_WAVE}, 0\ns_cbranch_scc1 {lab}")
    team_counter_off(k, idx, 60)
    k.rstamp(44 + 2*idx)
    k(f"""
    v_mov_b32 v12, s60
    v_mov_b32 v13, 1
    s_mov_b64 exec, 1
    buffer_atomic_add v13, v12, s[{SRD_F}:{SRD_F+3}], 0 offen sc1
    """)
    poll(k, 1, 16)
    k.rstamp(45 + 2*idx)
    k(f"{lab}:")

def attn_fast(k, S, Q, O, TMP, MASK, PM):
    NEG = fhex(-1e30)
    KBf = TMP
    MX = TMP + 12
    NM = TMP + 14
    NG = TMP + 15
    VBf = TMP + 16
    PB = 2
    PBf = TMP + 40
    k(f"v_mov_b32 v{NG}, {NEG}")
    for r in range(16): k(f"v_mov_b32 v{O+r}, 0")
    order = [8, 0, 1, 2, 3, 4, 5, 6, 7]
    def kreads(i):
        t = order[i]; b = KBf + (i % 2)*6
        k(f"ds_read_b128 v[{b}:{b+3}], v14 offset:{t*1024}")
        k(f"ds_read_b64 v[{b+4}:{b+5}], v15 offset:{t*512}")
    def maxops(t, first):
        s = S + 16*t; out = []
        if first:
            out.append(f"v_max3_f32 v{MX}, v{s}, v{s+1}, v{s+2}")
            out.append(f"v_max3_f32 v{MX+1}, v{s+3}, v{s+4}, v{s+5}")
            rest = list(range(6, 16))
            i = 0
            while len(rest) >= 2:
                out.append(f"v_max3_f32 v{MX+i%2}, v{MX+i%2}, v{s+rest[0]}, v{s+rest[1]}"); rest = rest[2:]; i += 1
        else:
            for e in range(0, 16, 4):
                out.append(f"v_max3_f32 v{MX}, v{MX}, v{s+e}, v{s+e+1}")
                out.append(f"v_max3_f32 v{MX+1}, v{MX+1}, v{s+e+2}, v{s+e+3}")
        return out
    def merge():
        return [f"v_cndmask_b32 v{S+r}, v{S+r}, v{S+128+r}, s[{MASK+2*r}:{MASK+2*r+1}]" for r in range(16)]
    kreads(0)
    pend = []
    for i in range(9):
        t = order[i]; b = KBf + (i % 2)*6; s = S + 16*t
        if i+1 < 9:
            kreads(i+1); k("s_waitcnt lgkmcnt(2)")
        else:
            k("s_waitcnt lgkmcnt(0)")
        k(f"v_mfma_f32_32x32x16_bf16 v[{s}:{s+15}], v[{b}:{b+3}], v[{Q}:{Q+3}], 0")
        half = (len(pend)+1)//2
        for op in pend[:half]: k(op)
        k(f"v_mfma_f32_32x32x8_bf16 v[{s}:{s+15}], v[{b+4}:{b+5}], v[{Q+4}:{Q+5}], v[{s}:{s+15}]")
        for op in pend[half:]: k(op)
        pend = []
        if i == 3: pend = merge()
        elif i == 4: pend = maxops(0, True) + maxops(1, False)
        elif i >= 5: pend = maxops(order[i-2], False)
    for op in pend: k(op)
    k("s_nop 7")
    for op in maxops(6, False): k(op)
    k("s_nop 3")
    for op in maxops(7, False): k(op)
    k(f"""
    v_max_f32 v{MX}, v{MX}, v{MX+1}
    v_mov_b32 v{MX+1}, v{MX}
    s_nop 1
    v_permlane32_swap_b32 v{MX}, v{MX+1}
    s_nop 1
    v_max_f32 v{MX}, v{MX}, v{MX+1}
    v_mul_f32 v{NM}, s58, v{MX}
    """)
    k.stamp()
    def vreads(t, buf):
        vb = VBf + buf*8
        out = []
        for st in range(2):
            out.append(f"ds_read_b64_tr_b16 v[{vb+4*st}:{vb+4*st+1}], v7 offset:{t*2048 + st*1024}")
            out.append(f"ds_read_b64_tr_b16 v[{vb+4*st+2}:{vb+4*st+3}], v13 offset:{t*2048 + st*1024}")
        return out
    def pv(p, vb):
        return [f"v_mfma_f32_32x32x16_bf16 v[{O}:{O+15}], v[{vb}:{vb+3}], v[{p}:{p+3}], v[{O}:{O+15}]",
                f"v_mfma_f32_32x32x16_bf16 v[{O}:{O+15}], v[{vb+4}:{vb+7}], v[{p+4}:{p+7}], v[{O}:{O+15}]"]
    units = [1, 2, 3, 4, 5, 6, 7, 0]
    prev = []
    for ui, u in enumerate(units):
        s = S + 16*u
        buf = ui % 2
        valu = [f"v_fma_f32 v{s+r}, v{s+r}, s58, -v{NM}" for r in range(16)]
        valu += [f"v_exp_f32 v{s+r}, v{s+r}" for r in range(16)]
        cvt = [f"v_cvt_pk_bf16_f32 v{s+r}, v{s+2*r}, v{s+2*r+1}" for r in range(8)]
        if u != 0: rd = vreads(u, buf)
        else:      rd = vreads(8, buf) + vreads(0, 2)
        for x in rd: k(x)
        pos = {4: 0, 16: 1, 24: 2, 30: 3}
        mf = list(prev)
        for i, op in enumerate(valu):
            if i in (6, 20) and mf:
                if i == 6: k(f"s_waitcnt lgkmcnt({len(rd)})")
                k(mf.pop(0))
            k(op)
        for op in cvt: k(op)
        if u != 0:
            prev = pv(s, VBf + buf*8)
        else:
            for r in range(8): k(f"v_and_b32 v{s+8+r}, v{s+r}, v{PM+r}")
            for r in range(8): k(f"v_xor_b32 v{s+r}, v{s+r}, v{s+8+r}")
            k("s_waitcnt lgkmcnt(0)")
            k("s_nop 0")
            for op in pv(s+8, VBf + buf*8) + pv(s, VBf + 16): k(op)
    k("s_nop 15")

def attn_slow(k, S, Q, O, TMP, sFirst, MASK):
    gen.attn_core(k, S, Q, Q+4, O, TMP+0, "v14", "v15", "v7", sFirst, MASK)

def k_p8():
    k = K("p")
    vc, vh = VM(k), VM(k)
    st = Streams(k)
    NWG = 256
    k(f"s_cmp_ge_u32 s2, {NWG}\ns_cbranch_scc1 L_p_end")
    k.vprof = 255
    k.stamp()
    k.kptr(S_WS, "ws"); k.kptr(6, "x"); k.kptr(96, "out")
    k(f"""
    v_lshrrev_b32 v1, 6, v0
    v_and_b32 v2, 63, v0
    v_lshlrev_b32 v3, 4, v2
    v_readfirstlane_b32 s3, v1     ; wave 0..7
    v_add_u32 v4, 0x10000, v3
    v_add_u32 v5, 0x20000, v3
    """)
    gen.wgmap_4x8(k, S_B, S_M)
    k(f"""
    s_and_b32 s{S_W4}, s3, 3
    s_lshl_b32 s32, s{S_B}, 2
    s_add_u32 s32, s32, s{S_W4}    ; R32 = 4b + (wave&3)
    s_lshr_b32 s37, s{S_M}, 3
    s_lshl_b32 s38, s{S_B}, 1
    s_add_u32 s37, s37, s38        ; tb = 2b + (m>>3)
    s_and_b32 s38, s{S_M}, 7       ; j
    s_waitcnt lgkmcnt(0)
    """)
    k.wsrd(SRD_F, S_WS, "FLAGS")
    st.sync_after()
    HB = 42*KB
    LH = lambda n: f"L_H_{n}"
    LC = lambda n: f"L_C_{n}"
    k.wsrd(SRD_X, S_WS, "H1"); k.wsrd(SRD_W, S_WS, "W1")
    k(f"""
    s_mul_i32 s{S_XOFF}, s32, 40*1024
    s_mul_i32 s{S_WOFF}, s{S_M}, 160*1024
    """)
    rot_setup(k, 10, 2)
    k(f"""
    s_cmp_ge_u32 s3, 4
    s_cbranch_scc1 {LH('qkv')}
    """)
    st.use("C")
    ACC, WF = 64, 16
    q_slot = lambda s: (s % 7)*16*KB
    TAB = 156*KB
    def bias_init():
        k(f"v_lshrrev_b32 v6, 5, v2\nv_lshlrev_b32 v6, 4, v6\nv_add_u32 v6, {TAB}, v6")
        for T in range(4):
            for a in range(4):
                k(f"ds_read_b128 v[{ACC+16*T+4*a}:{ACC+16*T+4*a+3}], v6 offset:{T*128 + a*32}")
    c_gemm_a(k, vc, "q", 4, q_slot, ACC, WF, 128, 16, "", 8, init=bias_init if K0 else None)
    k.stamp()
    k.wsrd(SRD_A, S_WS, "KF1"); k.wsrd(SRD_B, S_WS, "KF2")
    QX = 104*KB
    Q = 224
    k(f"""
    v_lshlrev_b32 v6, 3, v2        ; lane*8
    v_lshrrev_b32 v7, 5, v2        ; h
    v_and_b32 v8, 31, v2
    v_cmp_eq_u32 s[46:47], 0, v7
    s_add_u32 s44, s3, 8
    s_lshl_b32 s45, s44, 11
    s_add_u32 s45, s45, 18432
    v_lshlrev_b32 v11, 6, v8
    v_add_u32 v11, s45, v11        ; V row
    v_lshrrev_b32 v8, 1, v8
    v_and_b32 v8, 7, v8            ; swizzle
    v_mov_b32 v12, 5
    v_cndmask_b32 v12, 0, v12, s[46:47]
    v_xor_b32 v12, v12, v8
    v_lshl_add_u32 v12, v12, 3, v11
    v_add_u32 v13, 1, v7                  ; B: dg 1+h
    v_xor_b32 v13, v13, v8
    v_lshl_add_u32 v13, v13, 3, v11
    v_add_u32 v14, 3, v7                  ; C: dg 3+h
    v_xor_b32 v14, v14, v8
    v_lshl_add_u32 v14, v14, 3, v11
    v_add_u32 v15, 6, v7                  ; D: dg 6+h
    v_xor_b32 v15, v15, v8
    v_lshl_add_u32 v15, v15, 3, v11
    v_mov_b32 v36, 0x3f80
    v_mov_b32 v37, 0
    v_cndmask_b32 v38, 0, v36, s[46:47]
    v_mov_b32 v39, 0
    s_barrier
    """)
    for hd in range(2):
        t1 = ACC + 32*hd + 16; P = 16 + 10*hd
        for r in range(6): k(f"v_cvt_pk_bf16_f32 v{P+r}, v{t1+4+2*r}, v{t1+5+2*r}")
        k(f"""
        v_cndmask_b32 v{P+6}, v{P}, v36, s[46:47]
        v_cndmask_b32 v{P+7}, v{P+1}, v37, s[46:47]
        ds_write_b64 v13, v[{P+2}:{P+3}] offset:{hd*HB}
        ds_write_b64 v14, v[{P+4}:{P+5}] offset:{hd*HB}
        ds_write_b64 v12, v[{P+6}:{P+7}] offset:{hd*HB}
        ds_write_b64 v15, v[38:39] offset:{hd*HB}
        """)
    k("s_waitcnt lgkmcnt(0)\ns_barrier")
    k(f"""
    s_lshl_b32 s45, s44, 10
    v_add_u32 v9, s45, v3
    s_lshl_b32 s45, s44, 9
    s_add_u32 s45, s45, 12288
    v_add_u32 v10, s45, v6         ; K2 slot
    s_mul_i32 s45, s3, 1536
    s_add_u32 s45, s45, {QX}
    v_add_u32 v14, s45, v3         ; Q exchange
    v_add_u32 v15, s45, v6
    """)
    for hd in range(2):
        t0 = ACC + 32*hd; t1 = t0 + 16
        P = 40 + 4*hd; P2 = 16 + 10*hd
        q = Q if hd == 0 else 48
        for r in range(2): k(f"v_cvt_pk_bf16_f32 v{P+r}, v{t0+12+2*r}, v{t0+13+2*r}")
        for r in range(2): k(f"v_cvt_pk_bf16_f32 v{P+2+r}, v{t1+2*r}, v{t1+2*r+1}")
        k(f"""
        s_lshl_b32 s45, s{S_M}, 1
        s_add_u32 s45, s45, {hd}
        s_lshl_b32 s48, s45, 6
        s_add_u32 s48, s48, s32
        s_lshl_b32 s49, s48, 10
        s_lshl_b32 s53, s48, 9
        """)
        vc.issue("kv", f"buffer_store_dwordx4 v[{P}:{P+3}], v3, s[{SRD_A}:{SRD_A+3}], s49 offen sc1")
        vc.issue("kv", f"buffer_store_dwordx2 v[{P2}:{P2+1}], v6, s[{SRD_B}:{SRD_B+3}], s53 offen sc1")
        k(f"ds_write_b128 v9, v[{P}:{P+3}] offset:{hd*HB}")
        k(f"ds_write_b64 v10, v[{P2}:{P2+1}] offset:{hd*HB}")
        for r in range(4): k(f"v_cvt_pk_bf16_f32 v{q+r}, v{t0+2*r}, v{t0+2*r+1}")
        for r in range(2): k(f"v_cvt_pk_bf16_f32 v{q+4+r}, v{t0+8+2*r}, v{t0+9+2*r}")
    k("ds_write_b128 v14, v[48:51]\nds_write_b64 v15, v[52:53] offset:1024")
    k.stamp()
    k("s_waitcnt lgkmcnt(0)")
    vc.drain()
    lds_arrive(k, 0)
    k.stamp()
    lk3 = k.lab("k3"); lk4 = k.lab("k3b")
    k(f"s_cmp_lg_u32 s3, 0\ns_cbranch_scc1 {lk3}")
    lds_wait(k, SY, 8)
    k(f"""
    s_lshl_b32 s60, s{S_B}, 4
    s_add_u32 s60, s60, s{S_M}
    s_lshl_b32 s60, s60, 7
    v_mov_b32 v12, s60
    v_mov_b32 v13, 1
    s_mov_b64 exec, 1
    buffer_store_dword v13, v12, s[{SRD_F}:{SRD_F+3}], 0 offen sc1
    s_mov_b64 exec, -1
    s_cmp_eq_u32 s{S_B}, 0
    s_cbranch_scc1 {lk4}
    s_sub_u32 s61, s60, 2048
    s_sub_u32 s62, s61, 2048
    s_cmp_eq_u32 s{S_B}, 1
    s_cselect_b32 s62, s61, s62
    v_mov_b32 v12, s62
    v_writelane_b32 v12, s61, 0
    """)
    poll(k, 2, 1)
    k(f"{lk4}:")
    lds_ready(k, 0)
    k(f"s_branch {LC('fetch')}\n{lk3}:")
    lds_wait(k, SY + 4, 1)
    k(f"s_branch {LC('fetch')}")
    st.use("H")
    k(f"{LH('qkv')}:")
    k(f"v_lshlrev_b32 v12, 2, v2\nv_add_u32 v12, {SY}, v12\nv_mov_b32 v13, 0\nds_write_b32 v12, v13")
    if K0:
        lb = k.lab("nobias")
        k(f"s_cmp_lg_u32 s3, 4\ns_cbranch_scc1 {lb}")
        k.wsrd(SRD_A, S_WS, "B1P")
        k(f"""
        v_lshrrev_b32 v16, 5, v2
        v_lshlrev_b32 v16, 13, v16          ; (lane>>5) * 16*512
        v_and_b32 v17, 31, v2
        v_lshl_add_u32 v16, v17, 4, v16
        s_lshl_b32 s59, s{S_M}, 9
        """)
        for i in range(10):
            k(f"buffer_load_dwordx4 v[{20+4*i}:{23+4*i}], v16, s[{SRD_A}:{SRD_A+3}], s59 offen\ns_add_u32 s59, s59, {2*16*512}")
        k(f"{lb}:")
    cur_init(k, S_WCUR, S_WOFF, 16*KB)
    RES = 144*KB
    o_slot = lambda s: [124*KB, 84*KB, 104*KB, 0, 20*KB][s]
    def qkv_tail():
        k.wsrd(SRD_W, S_WS, "WO"); k.srd(SRD_A, 6, 2048*1280); k.wsrd(SRD_B, S_WS, "MOD")
        k(f"""
        s_lshl_b32 s63, s37, 6
        s_mul_i32 s63, s63, 1280
        s_mul_i32 s59, s38, 160
        s_add_u32 s63, s63, s59
        """)
        for i in range(3):
            lab = k.lab("xt")
            k(f"""
            s_mul_i32 s61, s{S_W4}, 3
            s_add_u32 s61, s61, {i}
            s_cmp_ge_u32 s61, 10
            s_cbranch_scc1 {lab}
            s_lshl_b32 s59, s61, 6
            v_add_u32 v16, s59, v2
            v_mul_u32_u24 v17, 6554, v16
            v_lshrrev_b32 v17, 16, v17
            v_mul_u32_u24 v18, 10, v17
            v_sub_u32 v18, v16, v18
            v_mul_u32_u24 v17, 1280, v17
            v_lshlrev_b32 v18, 4, v18
            v_add_u32 v17, v17, v18
            s_lshl_b32 s59, s61, 10
            s_add_u32 m0, s59, {RES}
            s_nop 0
            buffer_load_dwordx4 v17, s[{SRD_A}:{SRD_A+3}], s63 offen lds
            {lab}:
            """)
        lab = k.lab("gt")
        k(f"""
        s_cmp_ge_u32 s{S_W4}, 2
        s_cbranch_scc1 {lab}
        s_mul_i32 s59, s{S_W4}, 3*2560
        s_add_u32 s59, s59, 2*2560
        s_mul_i32 s61, s38, 320
        s_add_u32 s59, s59, s61
        s_lshl_b32 s61, s{S_W4}, 10
        s_add_u32 m0, s61, {RES + 10*KB}
        s_nop 0
        buffer_load_dwordx4 v3, s[{SRD_B}:{SRD_B+3}], s59 offen lds
        {lab}:
        """)
        vh.note("res", 1)
        k(f"s_mul_i32 s{S_WOFF}, s38, 100*1024\ns_mul_i32 s62, s{S_W4}, {5*KB}")
        rot_setup(k, 5, 1)
        cur_init(k, S_WCUR, S_WOFF, 20*KB)
        h_stage(k, vh, "ow0", o_slot(0), 5, 5)
    def bias_finish():
        lb = k.lab("nobias2")
        k(f"s_cmp_lg_u32 s3, 4\ns_cbranch_scc1 {lb}")
        k("s_waitcnt vmcnt(8)")
        for i in range(1, 10):
            for r in range(4): k(f"v_add_f32 v{20+r}, v{20+r}, v{20+4*i+r}")
        for r in range(4): k(f"v_mov_b32 v{24+r}, v{20+r}")
        k("s_nop 1")
        for r in range(4): k(f"v_permlane32_swap_b32 v{20+r}, v{24+r}")
        k("s_nop 1")
        for r in range(4): k(f"v_add_f32 v{20+r}, v{20+r}, v{24+r}")
        k(f"v_lshlrev_b32 v16, 4, v2\nv_add_u32 v16, {TAB}, v16\ns_mov_b64 exec, 0xffffffff\nds_write_b128 v16, v[20:23]\ns_mov_b64 exec, -1\n{lb}:")
    h_gemm(k, vh, "q", 10, 4, q_slot, 7, 0, pre0=bias_finish if K0 else None)
    k.stamp()
    k.wsrd(SRD_C, S_WS, "VR")
    k(f"""
    s_add_u32 s44, s{S_W4}, 8
    s_lshl_b32 s45, s44, 11
    s_add_u32 s45, s45, 18432
    v_add_u32 v9, s45, v3
    s_barrier                      ; (M)
    s_barrier                      ; (K1)
    """)
    for hd in range(2):
        for i in range(2): k(f"ds_read_b128 v[{16+8*hd+4*i}:{19+8*hd+4*i}], v9 offset:{hd*HB + i*1024}")
    for hd in range(2):
        k(f"""
        s_lshl_b32 s45, s{S_M}, 1
        s_add_u32 s45, s45, {hd}
        s_lshl_b32 s45, s45, 17
        s_lshl_b32 s48, s32, 11
        s_add_u32 s45, s45, s48
        s_waitcnt lgkmcnt({2*(1-hd)})
        """)
        for i in range(2):
            vh.issue("kv", f"buffer_store_dwordx4 v[{16+8*hd+4*i}:{19+8*hd+4*i}], v3, s[{SRD_C}:{SRD_C+3}], s45 offen offset:{i*1024} sc1")
    vh.drain()
    lds_arrive(k, 0)
    k.stamp()
    lds_wait(k, SY + 4, 1)
    k(f"""
    s_mul_i32 s45, s{S_W4}, 1536
    s_add_u32 s45, s45, {QX}
    v_add_u32 v14, s45, v3
    v_lshlrev_b32 v6, 3, v2
    v_add_u32 v15, s45, v6
    ds_read_b128 v[{Q}:{Q+3}], v14
    ds_read_b64 v[{Q+4}:{Q+5}], v15 offset:1024
    """)
    k(f"{LC('fetch')}:")
    st.both()
    k.wsrd(SRD_A, S_WS, "KF1"); k.wsrd(SRD_B, S_WS, "KF2"); k.wsrd(SRD_C, S_WS, "VR")
    lskip = k.lab("nonb"); lskip2 = k.lab("nonb2")
    k(f"""
    v_lshlrev_b32 v6, 3, v2
    s_lshl_b32 s45, s{S_B}, 2
    s_sub_i32 s45, s45, 8               ; kt0
    s_add_i32 s47, s45, s3
    s_cmp_lt_i32 s47, 0
    s_cbranch_scc1 {lskip}
    """)
    for hd in range(2):
        k(f"""
        s_lshl_b32 s48, s{S_M}, 1
        s_add_u32 s48, s48, {hd}
        s_lshl_b32 s49, s48, 6
        s_add_u32 s49, s49, s47
        s_lshl_b32 s50, s49, 10
        s_lshl_b32 s51, s49, 9
        """)
        b_ = 160 + 8*hd
        k(f"buffer_load_dwordx4 v[{b_}:{b_+3}], v3, s[{SRD_A}:{SRD_A+3}], s50 offen sc1")
        k(f"buffer_load_dwordx2 v[{b_+4}:{b_+5}], v6, s[{SRD_B}:{SRD_B+3}], s51 offen sc1")
    for hd in range(2):
        k(f"""
        s_lshl_b32 s48, s{S_M}, 1
        s_add_u32 s48, s48, {hd}
        s_lshl_b32 s52, s48, 17
        s_lshl_b32 s53, s47, 11
        s_add_u32 s52, s52, s53
        """)
        for i in range(2):
            b_ = 176 + 8*hd + 4*i
            k(f"buffer_load_dwordx4 v[{b_}:{b_+3}], v3, s[{SRD_C}:{SRD_C+3}], s52 offen offset:{i*1024} sc1")
    k(f"""
    s_lshl_b32 s48, s3, 10
    v_add_u32 v9, s48, v3
    s_lshl_b32 s48, s3, 9
    s_add_u32 s48, s48, 12288
    v_add_u32 v10, s48, v6
    s_lshl_b32 s48, s3, 11
    s_add_u32 s48, s48, 18432
    v_add_u32 v56, s48, v3
    v_mov_b32 v57, v9
    v_mov_b32 v58, v10
    {lskip}:
    """)
    S, O, TMP, MASK, PM = 64, 208, 16, 64, 230
    gen.attn_masks(k, MASK, 2, 9)
    k(f"""
    s_lshr_b32 s46, s3, 2
    s_mul_i32 s44, s46, {HB}
    s_lshl_b32 s46, s{S_W4}, 10
    s_add_u32 s46, s46, s44
    v_add_u32 v14, s46, v3
    s_lshl_b32 s46, s{S_W4}, 9
    s_add_u32 s46, s46, s44
    s_add_u32 s46, s46, 12288
    v_add_u32 v15, s46, v6
    v_lshrrev_b32 v9, 5, v2
    v_lshlrev_b32 v9, 2, v9
    v_and_b32 v10, 15, v2
    v_lshrrev_b32 v10, 2, v10
    v_add_u32 v9, v9, v10              ; key 0..7
    v_lshrrev_b32 v10, 4, v2
    v_and_b32 v10, 1, v10
    v_lshlrev_b32 v10, 2, v10
    v_and_b32 v11, 3, v2
    v_add_u32 v10, v10, v11            ; d-group 0..7
    v_lshrrev_b32 v11, 1, v9
    v_xor_b32 v10, v10, v11
    v_lshlrev_b32 v9, 6, v9
    s_lshl_b32 s46, s{S_W4}, 11
    s_add_u32 s46, s46, s44
    s_add_u32 s46, s46, 18432
    v_add_u32 v9, s46, v9
    v_lshl_add_u32 v7, v10, 3, v9
    v_xor_b32 v10, 4, v10
    v_lshl_add_u32 v13, v10, 3, v9
    v_add_u32 v13, 512, v13
    s_sub_i32 s49, 8, s32
    s_max_i32 s49, s49, 0
    s_mov_b32 s58, {fhex(LOG2E * 20 ** -0.5)}
    v_mov_b32 v9, 0xffff
    v_mov_b32 v10, 0xffff0000
    """)
    for r in range(8):
        k(f"v_cndmask_b32 v{PM+r}, 0, v9, s[{MASK+4*r}:{MASK+4*r+1}]")
        k(f"v_cndmask_b32 v11, 0, v10, s[{MASK+4*r+2}:{MASK+4*r+3}]")
        k(f"v_or_b32 v{PM+r}, v{PM+r}, v11")
    k.stamp()
    k(f"s_cmp_lt_i32 s47, 0\ns_cbranch_scc1 {lskip2}")
    k("s_waitcnt vmcnt(4)")
    for hd in range(2):
        b_ = 160 + 8*hd
        k(f"ds_write_b128 v57, v[{b_}:{b_+3}] offset:{hd*HB}")
        k(f"ds_write_b64 v58, v[{b_+4}:{b_+5}] offset:{hd*HB}")
    k(f"{lskip2}:")
    k.stamp()
    lskip3 = k.lab("nonb3")
    k(f"s_cmp_lt_i32 s47, 0\ns_cbranch_scc1 {lskip3}")
    k("s_waitcnt vmcnt(0)")
    for hd in range(2):
        for i in range(2):
            b_ = 176 + 8*hd + 4*i
            k(f"ds_write_b128 v56, v[{b_}:{b_+3}] offset:{hd*HB + i*1024}")
    k(f"{lskip3}:")
    vc.done = len(vc.ops)-1; vh.done = len(vh.ops)-1
    k("s_waitcnt lgkmcnt(0)\ns_barrier")
    lnopf = k.lab("nopf")
    k(f"s_cmp_lt_u32 s3, 4\ns_cbranch_scc1 {lnopf}")
    qkv_tail()
    h_stage(k, vh, "ow1", o_slot(1), 5, 5)
    h_stage(k, vh, "ow2", o_slot(2), 5, 5)
    k(f"{lnopf}:")
    k.stamp()
    lslow = k.lab("slow"); ldone = k.lab("attdone")
    k(f"s_cmp_lg_u32 s49, 0\ns_cbranch_scc1 {lslow}")
    n0 = k.nstamp
    attn_fast(k, S, Q, O, TMP, MASK, PM)
    k(f"s_branch {ldone}\n{lslow}:")
    for r in range(16): k(f"v_mov_b32 v{O+r}, 0")
    prof = gen.PROF; gen.PROF = False
    gen.attn_core(k, S, Q, Q+4, O, TMP, "v14", "v15", "v7", 49, MASK, vV2="v13", k5=False)
    gen.PROF = prof
    k(f"{ldone}:")
    k.stamp()
    k.wsrd(SRD_A, S_WS, "O")
    k(f"""
    v_lshrrev_b32 v9, 5, v2
    v_cmp_eq_u32 s[46:47], 0, v9
    s_lshr_b32 s33, s3, 2              ; hd
    s_nop 0
    v_cndmask_b32 v12, v{O+8}, v{O+12}, s[46:47]
    v_rcp_f32 v12, v12
    v_and_b32 v10, 31, v2
    s_lshl_b32 s50, s32, 5
    v_add_u32 v10, s50, v10
    v_lshrrev_b32 v11, 4, v10
    v_mul_u32_u24 v11, 20*1024, v11
    v_and_b32 v10, 15, v10
    v_lshlrev_b32 v10, 4, v10
    v_add_u32 v11, v11, v10
    """)
    for r in range(12): k(f"v_mul_f32 v{O+r}, v{O+r}, v12")
    for r in range(6): k(f"v_cvt_pk_bf16_f32 v{16+r}, v{O+2*r}, v{O+2*r+1}")
    k(f"""
    s_mul_i32 s50, s{S_M}, 5
    s_lshl_b32 s51, s33, 1
    s_add_u32 s51, s51, s50
    v_add_u32 v12, s51, v9
    v_lshrrev_b32 v13, 2, v12
    v_lshlrev_b32 v13, 10, v13
    v_and_b32 v12, 3, v12
    v_lshlrev_b32 v12, 8, v12
    v_add3_u32 v12, v11, v12, v13
    buffer_store_dwordx4 v[16:19], v12, s[{SRD_A}:{SRD_A+3}], 0 offen sc1
    s_add_u32 s50, s50, 4
    s_lshr_b32 s51, s50, 2
    s_lshl_b32 s51, s51, 10
    s_and_b32 s50, s50, 3
    s_lshl_b32 s50, s50, 8
    s_add_u32 s50, s50, s51
    s_lshl_b32 s51, s33, 3
    s_add_u32 s50, s50, s51
    s_mov_b64 exec, s[46:47]
    buffer_store_dwordx2 v[20:21], v11, s[{SRD_A}:{SRD_A+3}], s50 offen sc1
    s_mov_b64 exec, -1
    s_barrier
    """)
    vc.note("o", 2); vh.note("o", 2)
    k.stamp()
    st.sync_after()
    k(f"s_cmp_ge_u32 s3, 4\ns_cbranch_scc1 {LH('wo')}")
    XB1 = 120*KB
    st.use("C")
    vc.drain()
    k.stamp()
    c_handoff(k, 1, 8)
    k.wsrd(SRD_X, S_WS, "O")
    def b_geometry(KS):
        k(f"""
        s_and_b32 s52, s3, 1
        s_lshr_b32 s53, s3, 1
        s_lshl_b32 s54, s37, 2
        s_lshl_b32 s55, s52, 1
        s_add_u32 s54, s54, s55
        s_mul_i32 s55, s54, {KS}
        s_mul_i32 s56, s53, {KS//2}
        s_add_u32 s55, s55, s56
        s_lshl_b32 s{S_XOFF}, s55, 10
        s_add_u32 s57, s54, s53        ; final R16
        """)
    b_geometry(20)
    rot_setup(k, 5, 1)
    k(f"""
    v_and_b32 v9, 15, v2
    v_lshrrev_b32 v10, 4, v2
    s_lshl_b32 s59, s57, 4
    v_add_u32 v11, s59, v9             ; token
    s_mul_i32 s59, s38, 80
    v_lshlrev_b32 v12, 2, v10
    v_add_u32 v12, s59, v12
    v_mul_u32_u24 v13, 1280, v11
    v_lshlrev_b32 v14, 1, v12
    v_add_u32 v250, v13, v14
    v_lshrrev_b32 v14, 5, v11
    v_mul_u32_u24 v14, 40*1024, v14
    v_and_b32 v15, 31, v11
    v_lshrrev_b32 v56, 1, v10
    v_lshlrev_b32 v56, 5, v56
    v_add_u32 v15, v15, v56
    v_lshlrev_b32 v15, 4, v15
    v_add_u32 v14, v14, v15
    v_and_b32 v15, 1, v10
    v_lshlrev_b32 v15, 3, v15
    v_add_u32 v14, v14, v15
    s_mul_i32 s59, s38, 5*1024
    v_add_u32 v14, s59, v14
    v_and_b32 v15, 63, v11
    v_mul_u32_u24 v15, 160, v15
    v_lshlrev_b32 v56, 3, v10
    v_add_u32 v15, v15, v56
    v_add_u32 v15, {RES}, v15
    v_lshlrev_b32 v251, 4, v10
    v_add_u32 v251, {RES + 10*KB}, v251
    """)
    k.stamp()
    ACC, WF = 64, 16
    c_gemm_b(k, vc, "o", 20, o_slot, ACC, WF, 128, 10, 4)
    k.stamp()
    c_exchange(k, ACC, 16, XB1)
    X1R = 240
    for T in range(5):
        k(f"ds_read_b64 v[{104+2*T}:{105+2*T}], v15 offset:{T*32}")
        k(f"ds_read_b128 v[{116+4*T}:{119+4*T}], v251 offset:{T*64}")
    k("s_waitcnt lgkmcnt(0)")
    for T in range(5):
        for r in range(4):
            e = ACC + 4*T + r; src = 104 + 2*T + r//2
            k(f"v_lshlrev_b32 v16, 16, v{src}" if r % 2 == 0 else f"v_and_b32 v16, 0xffff0000, v{src}")
            k(f"v_fma_f32 v{e}, v{e}, v{116+4*T+r}, v16")
    for T in range(5):
        for r in range(2): k(f"v_cvt_pk_bf16_f32 v{X1R+2*T+r}, v{ACC+4*T+2*r}, v{ACC+4*T+2*r+1}")
    k.wsrd(SRD_A, S_WS, "X1"); k.wsrd(SRD_C, S_WS, "STAT")
    for T in range(5):
        k(f"s_mov_b32 s59, {T*1024}")
        vc.issue("x1", f"buffer_store_dwordx2 v[{X1R+2*T}:{X1R+2*T+1}], v14, s[{SRD_A}:{SRD_A+3}], s59 offen sc1")
    k("v_mov_b32 v16, 0\nv_mov_b32 v17, 0")
    for r in range(10):
        k(f"""v_lshlrev_b32 v18, 16, v{X1R+r}
        v_and_b32 v19, 0xffff0000, v{X1R+r}
        v_add_f32 v16, v16, v18
        v_fmac_f32 v17, v18, v18
        v_add_f32 v16, v16, v19
        v_fmac_f32 v17, v19, v19""")
    for sw in ("v_permlane16_swap_b32", "v_permlane32_swap_b32"):
        k(f"""
        v_mov_b32 v18, v16
        v_mov_b32 v19, v17
        s_nop 1
        {sw} v16, v18
        {sw} v17, v19
        s_nop 1
        v_add_f32 v16, v16, v18
        v_add_f32 v17, v17, v19
        """)
    k(f"v_lshlrev_b32 v18, 6, v11\ns_lshl_b32 s59, s38, 3\ns_mov_b64 exec, 0xffff")
    vc.issue("x1", f"buffer_store_dwordx2 v[16:17], v18, s[{SRD_C}:{SRD_C+3}], s59 offen sc1")
    k("s_mov_b64 exec, -1")
    k.stamp()
    vc.drain()
    k.stamp()
    c_handoff(k, 2, 4)
    g_slot = lambda s: (s % 6)*24*KB
    k.wsrd(SRD_X, S_WS, "X1"); k.wsrd(SRD_B, S_WS, "STAT"); k.wsrd(SRD_C, S_WS, "HH")
    k(f"""
    s_mul_i32 s{S_XOFF}, s32, 40*1024
    v_and_b32 v8, 31, v2
    s_lshl_b32 s59, s32, 5
    v_add_u32 v8, s59, v8              ; token
    v_lshlrev_b32 v9, 6, v8
    """)
    rot_setup(k, 10, 2)
    k.stamp()
    ACC, WF = 64, 16
    extra = [(33+i, ("gst", f"buffer_load_dwordx4 v[{224+4*i}:{227+4*i}], v9, s[{SRD_B}:{SRD_B+3}], 0 offen offset:{16*i} sc1", None)) for i in range(4)]
    c_gemm_a(k, vc, "g", 6, g_slot, ACC, WF, 160, 16, "sc1", 8, extra)
    k.stamp()
    k("s_barrier")
    vc.wait("gst")
    SM = 224
    k(f"""
    v_add_f32 v{SM}, v{SM}, v{SM+2}
    v_add_f32 v{SM+1}, v{SM+1}, v{SM+3}
    v_add_f32 v{SM+4}, v{SM+4}, v{SM+6}
    v_add_f32 v{SM+5}, v{SM+5}, v{SM+7}
    v_add_f32 v{SM+8}, v{SM+8}, v{SM+10}
    v_add_f32 v{SM+9}, v{SM+9}, v{SM+11}
    v_add_f32 v{SM+12}, v{SM+12}, v{SM+14}
    v_add_f32 v{SM+13}, v{SM+13}, v{SM+15}
    v_add_f32 v{SM}, v{SM}, v{SM+4}
    v_add_f32 v{SM+1}, v{SM+1}, v{SM+5}
    v_add_f32 v{SM+8}, v{SM+8}, v{SM+12}
    v_add_f32 v{SM+9}, v{SM+9}, v{SM+13}
    v_add_f32 v{SM}, v{SM}, v{SM+8}
    v_add_f32 v{SM+1}, v{SM+1}, v{SM+9}
    v_mul_f32 v{SM}, {fhex(1.0/640)}, v{SM}
    v_mul_f32 v{SM+1}, {fhex(1.0/640)}, v{SM+1}
    v_fma_f32 v{SM+1}, -v{SM}, v{SM}, v{SM+1}
    v_max_f32 v{SM+1}, 0, v{SM+1}
    v_add_f32 v{SM+1}, {fhex(1e-5)}, v{SM+1}
    v_rsq_f32 v{SM+2}, v{SM+1}
    v_lshrrev_b32 v7, 5, v2
    v_mov_b32 v{SM+3}, v{SM+2}            ; r, r
    v_mul_f32 v{SM+4}, v{SM}, v{SM+2}
    v_sub_f32 v{SM+4}, 0, v{SM+4}         ; -mu*r
    v_mov_b32 v{SM+5}, v{SM+4}
    v_lshlrev_b32 v6, 5, v7
    v_add_u32 v6, {TAB}, v6
    v_lshrrev_b32 v9, 4, v8
    v_mul_u32_u24 v9, 48*1024, v9
    v_and_b32 v10, 15, v8
    v_lshlrev_b32 v10, 4, v10
    v_add_u32 v9, v9, v10
    v_lshlrev_b32 v10, 8, v7
    v_add_u32 v9, v9, v10
    s_mul_i32 s59, s{S_M}, 6
    """)
    def tab_reads(T, b):
        for a in range(4):
            k(f"ds_read_b128 v[{b+8*a}:{b+8*a+3}], v6 offset:{T*256 + a*64}")
            k(f"ds_read_b128 v[{b+8*a+4}:{b+8*a+7}], v6 offset:{T*256 + a*64 + 16}")
    tab_reads(0, 160)
    for T in range(6):
        acc = ACC + 16*T
        b = 160 + 32*(T % 2)
        if T+1 < 6:
            tab_reads(T+1, 160 + 32*((T+1) % 2)); k("s_waitcnt lgkmcnt(8)")
        else:
            k("s_waitcnt lgkmcnt(0)")
        for a in range(4):
            for r in range(0, 4, 2):
                e = acc + 4*a + r; cs = b + 8*a + r; bs = cs + 4
                k(f"v_pk_fma_f32 v[{bs}:{bs+1}], v[{cs}:{cs+1}], v[{SM+4}:{SM+5}], v[{bs}:{bs+1}]")
                k(f"v_pk_fma_f32 v[{e}:{e+1}], v[{e}:{e+1}], v[{SM+2}:{SM+3}], v[{bs}:{bs+1}]")
        for r in range(0, 4, 2):
            k(f"v_pk_mul_f32 v[{acc+r}:{acc+r+1}], v[{acc+r}:{acc+r+1}], v[{acc+4+r}:{acc+5+r}]")
            k(f"v_pk_mul_f32 v[{acc+8+r}:{acc+9+r}], v[{acc+8+r}:{acc+9+r}], v[{acc+12+r}:{acc+13+r}]")
        p = 16 + 4*T
        k(f"v_cvt_pk_bf16_f32 v{p}, v{acc}, v{acc+1}")
        k(f"v_cvt_pk_bf16_f32 v{p+1}, v{acc+2}, v{acc+3}")
        k(f"v_cvt_pk_bf16_f32 v{p+2}, v{acc+8}, v{acc+9}")
        k(f"v_cvt_pk_bf16_f32 v{p+3}, v{acc+10}, v{acc+11}")
        k(f"""
        s_add_u32 s60, s59, {T}
        s_lshr_b32 s61, s60, 1
        s_lshl_b32 s61, s61, 10
        s_and_b32 s60, s60, 1
        s_lshl_b32 s60, s60, 9
        s_add_u32 s61, s61, s60
        """)
        vc.issue("hh", f"buffer_store_dwordx4 v[{p}:{p+3}], v9, s[{SRD_C}:{SRD_C+3}], s61 offen sc1")
    k.stamp()
    vc.drain()
    k.stamp()
    c_handoff(k, 3, 4)
    d_slot = lambda s: ((s + 4) % 6)*24*KB
    k.wsrd(SRD_X, S_WS, "HH")
    k.srd(SRD_A, 96, 2048*1280)
    b_geometry(48)
    rot_setup(k, 12, 3)
    k.stamp()
    ACC, WF = 64, 16
    c_gemm_b(k, vc, "d", 48, d_slot, ACC, WF, 104, 16, 6)
    k.stamp()
    c_exchange(k, ACC, 16, 0)
    for T in range(5): k(f"ds_read_b128 v[{116+4*T}:{119+4*T}], v251 offset:{1024 + T*64}")
    k("s_waitcnt lgkmcnt(0)")
    for T in range(5):
        for r in range(4):
            e = ACC + 4*T + r; src = X1R + 2*T + r//2
            k(f"v_lshlrev_b32 v16, 16, v{src}" if r % 2 == 0 else f"v_and_b32 v16, 0xffff0000, v{src}")
            k(f"v_fma_f32 v{e}, v{e}, v{116+4*T+r}, v16")
    for T in range(5):
        for r in range(2): k(f"v_cvt_pk_bf16_f32 v{20+2*T+r}, v{ACC+4*T+2*r}, v{ACC+4*T+2*r+1}")
    for T in range(5):
        k(f"buffer_store_dwordx2 v[{20+2*T}:{21+2*T}], v250, s[{SRD_A}:{SRD_A+3}], 0 offen offset:{T*32}")
    k.stamps_out(2, S_WS, S_WAVE)
    k("s_endpgm")
    st.use("H")
    k(f"{LH('wo')}:")
    k(f"s_mul_i32 s62, s{S_W4}, {5*KB}")
    h_stage(k, vh, "ow3", o_slot(3), 5, 5)
    k("s_waitcnt vmcnt(5)")
    lds_arrive(k, 1)
    h_stage(k, vh, "ow4", o_slot(4), 5, 5)
    k.stamp()
    vh.ops = ["ow0", "ow1", "ow2"] + vh.ops[-10:]; vh.done = 2
    h_gemm(k, vh, "o", 5, 5, o_slot, 5, 5)
    k.stamp()
    k("s_barrier\ns_barrier")
    k.wsrd(SRD_W, S_WS, "W2")
    if not K0: k.wsrd(SRD_A, S_WS, "CB2")
    k(f"s_mul_i32 s{S_WOFF}, s{S_M}, 240*1024\ns_mul_i32 s62, s{S_W4}, {6*KB}")
    rot_setup(k, 10, 2)
    cur_init(k, S_WCUR, S_WOFF, 24*KB)
    for s in range(3): h_stage(k, vh, f"gw{s}", g_slot(s), 10, 6)
    if not K0:
        k(f"""
        s_lshl_b32 s59, s{S_M}, 11
        s_mov_b32 m0, {TAB}
        s_nop 0
        """)
        vh.issue("tab", f"buffer_load_dwordx4 v3, s[{SRD_A}:{SRD_A+3}], s59 offen lds")
        vh.issue("tab", f"buffer_load_dwordx4 v3, s[{SRD_A}:{SRD_A+3}], s59 offen offset:1024 lds")
    k.stamp()
    def tab_loads():
        k.wsrd(SRD_A, S_WS, "CB2P")
        k(f"""
        v_lshrrev_b32 v16, 5, v2
        v_lshlrev_b32 v16, 15, v16          ; (lane>>5) * 16*2048
        v_and_b32 v17, 31, v2
        v_lshl_add_u32 v16, v17, 4, v16
        s_lshl_b32 s59, s{S_W4}, 9
        v_add_u32 v16, s59, v16
        s_lshl_b32 s59, s{S_M}, 11
        """)
        for i in range(10):
            vh.issue("tabp", f"buffer_load_dwordx4 v[{20+4*i}:{23+4*i}], v16, s[{SRD_A}:{SRD_A+3}], s59 offen")
            k(f"s_add_u32 s59, s59, {2*16*2048}")
    def tab_finish():
        vh.wait("tabp")
        for i in range(1, 10):
            for r in range(4): k(f"v_add_f32 v{20+r}, v{20+r}, v{20+4*i+r}")
        for r in range(4): k(f"v_mov_b32 v{24+r}, v{20+r}")
        k("s_nop 1")
        for r in range(4): k(f"v_permlane32_swap_b32 v{20+r}, v{24+r}")
        k("s_nop 1")
        for r in range(4): k(f"v_add_f32 v{20+r}, v{20+r}, v{24+r}")
        k(f"""
        v_and_b32 v16, 31, v2
        v_lshlrev_b32 v16, 4, v16
        s_lshl_b32 s59, s{S_W4}, 9
        s_add_u32 s59, s59, {TAB}
        v_add_u32 v16, s59, v16
        s_mov_b64 exec, 0xffffffff
        ds_write_b128 v16, v[20:23]
        s_mov_b64 exec, -1
        s_waitcnt lgkmcnt(0)
        """)
    dstate = {"n": 0}
    def wd_next(s=None):
        if dstate["n"] == 0:
            k.wsrd(SRD_W, S_WS, "WD")
            k(f"s_mul_i32 s{S_WOFF}, s38, 240*1024\ns_mul_i32 s62, s{S_W4}, {5*KB}")
            rot_setup(k, 12, 3)
            cur_init(k, S_WCUR, S_WOFF, 20*KB)
        i = dstate["n"]
        if s is not None and i > s-5: return
        h_stage(k, vh, f"dw{i}", d_slot(i), 12, 5); dstate["n"] += 1
    def g_post(s):
        if s == 5 and K0: tab_loads()
        if s >= 5: wd_next(s)
        if s == 8 and K0: tab_finish()
    h_gemm(k, vh, "g", 10, 6, g_slot, 6, 3, lead=3, post=g_post)
    k.stamp()
    k("s_barrier                          ; (GM)")
    while dstate["n"] < 6: wd_next()
    k.stamp()
    h_gemm(k, vh, "d", 12, 5, d_slot, 6, 6)
    k.stamp()
    k("s_barrier\ns_barrier")
    k.stamps_out(2, S_WS, S_WAVE)
    k("L_p_end:\ns_endpgm")
    return k.text(), NWG, 512, 160*1024, 256, 256

V3 = [("mod", gen.k_mod), ("prep", gen.k_prep), ("p", k_p8)]
V4 = [("k0", gen4.k_k0), ("p", k_p8)]
if __name__ == "__main__":
    out = sys.argv[1]
    if len(sys.argv) > 2 and sys.argv[2] == "prof": gen.PROF = True
    open(out, "w").write(gen.build(V4 if K0 else V3))
    print("written", out)
```
